```python
import torch

def _softmax(x, axis=-1):
    return torch.softmax(x, dim=axis)
def _gelu(x):
    return torch.nn.functional.gelu(x, approximate="tanh")
def _silu(x):
    return torch.nn.functional.silu(x)
def _sigmoid(x):
    return torch.sigmoid(x)
def _layernorm(x, axis=-1, eps=1e-5):
    m = x.mean(dim=axis, keepdim=True)
    v = x.var(dim=axis, keepdim=True, unbiased=False)
    return (x - m) / torch.sqrt(v + eps)
def _scatter_add(tgt, idx, src, axis=0):
    return tgt.clone().index_add_(axis, idx, src)
def _segment_sum(src, seg, n):
    out = torch.zeros((n,) + src.shape[1:], dtype=src.dtype)
    return out.index_add_(0, seg, src)
def _pad(x, pw):
    flat = tuple(v for pair in reversed(pw) for v in pair)
    return torch.nn.functional.pad(x, flat)

kernel_name = 'standalone__mpnn_edge_mlp__graph'

def setup_inputs():

    _w = (lambda a: (lambda t: t.to(torch.bfloat16) if t.is_floating_point() else t)(torch.as_tensor(a)))
    N, deg, D, De = 10000, 16, 128, max(16, 1)
    E = N * deg
    return {
        "x": _w((lambda *s: torch.randn(*s, dtype=torch.bfloat16) * 0.05)(N, D)),
        "e_attr": _w((lambda *s: torch.randn(*s, dtype=torch.bfloat16) * 0.4)(E, De)),
        "src": _w((lambda lo, hi, *s: torch.randint(lo, hi, s))(0, N, E).to(torch.int64)),
        "dst": _w((lambda lo, hi, *s: torch.randint(lo, hi, s))(0, N, E).to(torch.int64)),
        "w_msg": _w((lambda *s: torch.randn(*s, dtype=torch.bfloat16) * 0.4)(2 * D + De, D)),
        "w_upd": _w((lambda *s: torch.randn(*s, dtype=torch.bfloat16) * 0.05)(2 * D, D)),
    }

def reference(x, e_attr, src, dst, w_msg, w_upd):
    N, D = x.shape
    m_in = torch.concatenate([x[src], x[dst], e_attr], axis=-1)
    msg = _silu(m_in @ w_msg)
    agg = _segment_sum(msg, dst, N)
    return _silu(torch.concatenate([x, agg], axis=-1) @ w_upd)
```

```python
import re

TRANS = ("v_exp_f32", "v_rcp_f32", "v_log_f32", "v_rsq_f32", "v_sqrt_f32", "v_sin_f32", "v_cos_f32")


def regs_of(tok):
    tok = tok.strip()
    tok = tok.lstrip("-")
    if tok.startswith("abs(") or tok.startswith("|"):
        tok = tok.replace("abs(", "").replace(")", "").replace("|", "")
    m = re.fullmatch(r"([vsa])(\d+)", tok)
    if m:
        return {(m.group(1), int(m.group(2)))}
    m = re.fullmatch(r"([vsa])\[(\d+):(\d+)\]", tok)
    if m:
        return {(m.group(1), i) for i in range(int(m.group(2)), int(m.group(3)) + 1)}
    if tok in ("vcc", "vcc_lo", "vcc_hi"):
        return {("vcc", 0)}
    if tok in ("exec", "exec_lo", "exec_hi"):
        return {("exec", 0)}
    if tok == "m0":
        return {("m0", 0)}
    return set()


class Ins:
    def __init__(self, text):
        self.text = text
        t = text.split(";")[0].strip()
        self.op = t.split()[0]
        rest = t[len(self.op):].strip()
        ops, depth, cur = [], 0, ""
        for ch in rest:
            if ch == "[":
                depth += 1
            if ch == "]":
                depth -= 1
            if ch == "," and depth == 0:
                ops.append(cur.strip())
                cur = ""
            else:
                cur += ch
        if cur.strip():
            ops.append(cur.strip())
        self.mods = ""
        if ops:
            parts = ops[-1].split(None, 1)
            ops[-1] = parts[0]
            self.mods = parts[1] if len(parts) > 1 else ""
        self.ops = ops
        op = self.op
        self.is_mfma = op.startswith("v_mfma")
        self.is_valu = op.startswith("v_") and not self.is_mfma
        self.is_trans = any(op.startswith(x) for x in TRANS)
        self.is_ds = op.startswith("ds_")
        self.is_vmem = op.startswith("buffer_") or op.startswith("global_")
        self.is_salu = op.startswith("s_")
        self.is_dpp = "_dpp" in op
        self.is_lds_dma = self.is_vmem and (" lds" in " " + self.mods + " " or "load_lds" in op)
        d, s = set(), set()
        R = [regs_of(o) for o in ops]
        if self.is_mfma:
            d = R[0]
            self.srcA, self.srcB, self.srcC = R[1], R[2], R[3]
            s = R[1] | R[2] | R[3]
        elif self.is_valu:
            if op.startswith("v_cmp"):
                d = R[0]
                s = set().union(*R[1:])
            elif op.startswith("v_add_co") or op.startswith("v_sub_co") or op.startswith("v_addc_co"):
                d = R[0] | R[1]
                s = set().union(*R[2:])
            elif op.startswith("v_nop"):
                pass
            else:
                d = R[0]
                s = set().union(*R[1:]) if len(R) > 1 else set()
                if op.startswith("v_fmac") or self.is_dpp or op.startswith("v_writelane") or "permlane" in op:
                    s |= R[0]
                if "permlane" in op and "swap" in op:
                    d = R[0] | R[1]
        elif self.is_ds:
            if op.startswith("ds_read") or "_rtn_" in op or "permute" in op or "swizzle" in op:
                d = R[0]
                s = set().union(*R[1:])
            else:
                s = set().union(*R)
        elif self.is_vmem:
            if self.is_lds_dma or "store" in op or ("atomic" in op and "sc0" not in self.mods):
                s = set().union(*R)
                if self.is_lds_dma:
                    s |= {("m0", 0)}
            else:
                d = R[0]
                s = set().union(*R[1:])
        elif self.is_salu:
            if op.startswith("s_cmp") or op.startswith("s_cbranch") or op.startswith("s_branch") or op in (
                "s_waitcnt", "s_barrier", "s_nop", "s_endpgm", "s_setprio", "s_sleep"):
                s = set().union(*R) if R else set()
            else:
                d = R[0] if R else set()
                s = set().union(*R[1:]) if len(R) > 1 else set()
                if "saveexec" in op:
                    d = d | {("exec", 0)}
        self.d, self.s = d, s
        self.wide_store = self.is_vmem and "store" in op and ("x4" in op or "x3" in op)
        self.store_data = set()
        if self.wide_store:
            self.store_data = R[0] if op.startswith("buffer_") else R[1]

    def states(self):
        if self.op == "s_nop":
            return int(self.ops[0], 0) + 1
        return 1


def need(prod, cons):
    n = 0
    pv = {r for r in prod.d if r[0] in "va"}
    ps = {r for r in prod.d if r[0] in ("s", "vcc")}
    if prod.is_valu:
        if prod.is_trans and cons.is_valu and not cons.is_trans and (pv & cons.s):
            n = max(n, 1)
        if prod.is_trans and cons.is_valu and cons.is_trans and (pv & cons.s):
            n = max(n, 1)
        if cons.is_mfma and (pv & cons.s):
            n = max(n, 2)
        if cons.is_dpp and (pv & cons.s):
            n = max(n, 2)
        if "permlane" in cons.op and (pv & cons.s):
            n = max(n, 2)
        if cons.op.startswith("v_readlane") or cons.op.startswith("v_readfirstlane"):
            if pv & cons.s:
                n = max(n, 1)
        if ps:
            if cons.is_vmem and (ps & cons.s):
                n = max(n, 5)
            if cons.is_valu and (ps & cons.s):
                n = max(n, 2)
                if cons.op.startswith("v_readlane") or cons.op.startswith("v_writelane"):
                    n = max(n, 4)
            if cons.is_salu and (ps & cons.s):
                n = max(n, 1)
    if prod.is_salu and ("m0", 0) in prod.d and cons.is_lds_dma:
        n = max(n, 1)
    if prod.is_mfma:
        p = 8 if "32x32" in prod.op else 4
        D = prod.d
        if cons.is_mfma:
            if D & (cons.srcA | cons.srcB):
                n = max(n, 12 if p == 8 else 8)
            if D & cons.srcC and not (cons.srcC == D and cons.op == prod.op):
                n = max(n, 10 if p == 8 else 6)
            if D & cons.d and not (cons.srcC == D):
                n = max(n, 10 if p == 8 else 6)
        elif cons.is_valu or cons.is_ds or cons.is_vmem:
            if D & (cons.s | cons.d):
                n = max(n, 12 if p == 8 else 8)
        if cons.is_valu and (prod.srcC & cons.d):
            n = max(n, 7 if p == 8 else 3)
    if prod.wide_store and (prod.store_data & cons.d):
        n = max(n, 2)
    return n


class Asm:
    def __init__(self):
        self.lines = []
        self.hist = []
        self.log = []

    def raw(self, text):
        self.lines.append(text)

    def label(self, name):
        self.lines.append(name + ":")

    def c(self, text):
        self.lines.append("    ; " + text)

    def __call__(self, text):
        for t in text.strip().split("\n"):
            t = t.strip()
            if not t or t.startswith(";"):
                continue
            if t.endswith(":"):
                self.lines.append(t)
                continue
            if t.startswith("."):
                self.lines.append(t)
                continue
            ins = Ins(t)
            dist, pad = 0, 0
            for p in reversed(self.hist):
                k = need(p, ins)
                if k > dist:
                    pad = max(pad, k - dist)
                dist += p.states()
                if dist >= 20:
                    break
            if pad:
                self.log.append((len(self.lines), pad, t))
                nop = Ins("s_nop %d" % (pad - 1))
                self.lines.append("    s_nop %d" % (pad - 1))
                self.hist.append(nop)
            self.lines.append("    " + t)
            self.hist.append(ins)
            self.hist = self.hist[-24:]

    def text(self):
        return "\n".join(self.lines) + "\n"


class Regs:
    def __init__(self, kind, start, limit):
        self.kind, self.next, self.limit = kind, start, limit
        self.names = {}

    def alloc(self, name, n=1, align=1):
        if n > 1 and align == 1:
            align = 2
        self.next = (self.next + align - 1) // align * align
        b = self.next
        self.next += n
        assert self.next <= self.limit, "out of %s regs at %s" % (self.kind, name)
        self.names[name] = (b, n)
        return b


def vr(b, n=1):
    return "v%d" % b if n == 1 else "v[%d:%d]" % (b, b + n - 1)


def sr(b, n=1):
    return "s%d" % b if n == 1 else "s[%d:%d]" % (b, b + n - 1)
```

```python
import struct
import sys
from asmlib import Asm, Ins, Regs, vr, sr

NAME = "standalone__mpnn_edge_mlp__graph"
N, E = 10000, 160000
G1, CH, CAPK = 80, 2000, 24
R, D = 13, 4
XR = 0
EA = 65536
ST = EA + 2 * R * 1024
MISC = ST + 2 * R * 2048
LB = MISC + 256
LCAP = (R + D) * 32
LEND = LB + 2 * LCAP * 8
AG = 147456
LDS = 163840
NT = 69632
CNT = MISC
OVF = MISC + 4
CELLS_BYTES = 256 * G1 * 128
OVF_MARK = 0xFFFFFFFE
LOG2E = 1.4426950408889634


def f32(x):
    return "0x%08x" % struct.unpack("<I", struct.pack("<f", x))[0]


class Opt:
    mode = "two"
    stamps = False


S_X, S_EAP, S_SRC, S_DST, S_WM, S_WU, S_OUT, S_DBG, S_WS = 4, 6, 8, 10, 12, 14, 16, 18, 20
RX, REA, RSRC, RDST, RWM, RWU, ROUT, RWS = 24, 28, 32, 36, 40, 44, 48, 52
sW, sG, sQ, sT0, sT1, sT2 = 56, 57, 58, 59, 60, 61
sEX = 62
sCAP, sLCAP, sRC = 64, 65, 66
sNA, sNB, sTG, sTMAX, sI = 67, 68, 69, 70, 71
sM0 = 72
sOV = 73
sC = 76
sTAG = 78
sOVR = 79
sST = 80


def srd(a, d, p, nbytes):
    a(f"s_mov_b32 s{d}, s{p}")
    a(f"s_and_b32 s{d+1}, s{p+1}, 0xffff")
    a(f"s_mov_b32 s{d+2}, {nbytes}")
    a(f"s_mov_b32 s{d+3}, 0x20000")


def stamp(a, k):
    if Opt.stamps:
        a(f"s_memrealtime s[{sST+2*k}:{sST+2*k+1}]")


def emit_bin(a, base, v0, lbl, store_flags=""):
    PL = base
    CN = base + 24576
    FL = CN + 1024
    vD, vS = v0, v0 + 4
    vK = v0 + 8
    vB = v0 + 12
    vA, vT, vU, vOne = v0 + 16, v0 + 17, v0 + 18, v0 + 19
    vF = v0 + 20
    a.c("---- producer: bin 2000 edges of chunk s2")
    a(f"s_mul_i32 s{sT0}, s2, {CH*4}")
    a(f"v_lshlrev_b32 v{vA}, 4, v0")
    a(f"v_cmp_gt_u32 vcc, {CH//4}, v0")
    a(f"s_and_saveexec_b64 s[{sEX}:{sEX+1}], vcc")
    a(f"buffer_load_dwordx4 {vr(vD,4)}, v{vA}, s[{RDST}:{RDST+3}], s{sT0} offen")
    a(f"buffer_load_dwordx4 {vr(vS,4)}, v{vA}, s[{RSRC}:{RSRC+3}], s{sT0} offen")
    a(f"s_mov_b64 exec, s[{sEX}:{sEX+1}]")
    for i in range(4):
        a(f"v_mov_b32 v{vF+i}, -1")
    a(f"v_add_u32 v{vT}, {PL}, v{vA}")
    for k in range(3):
        a(f"ds_write_b128 v{vT}, {vr(vF,4)} offset:{k*8192}")
    a(f"v_mov_b32 v{vOne}, 0")
    a(f"v_lshlrev_b32 v{vU}, 2, v0")
    a(f"v_add_u32 v{vU}, {CN}, v{vU}")
    a(f"ds_write_b32 v{vU}, v{vOne}")
    a(f"v_mov_b32 v{vOne}, 1")
    a("s_waitcnt lgkmcnt(0)")
    a("s_barrier")
    a(f"s_and_saveexec_b64 s[{sEX}:{sEX+1}], vcc")
    a("s_waitcnt vmcnt(1)")
    for j in range(4):
        a(f"v_and_b32 v{vB+j}, 255, v{vD+j}")
        a(f"v_lshlrev_b32 v{vT}, 2, v{vB+j}")
        a(f"v_add_u32 v{vT}, {CN}, v{vT}")
        a(f"ds_add_rtn_u32 v{vK+j}, v{vT}, v{vOne}")
    a("s_waitcnt vmcnt(0)")
    a(f"v_lshlrev_b32 v{vA}, 22, v0")
    for j in range(4):
        a(f"v_lshrrev_b32 v{vD+j}, 8, v{vD+j}")
        a(f"v_lshl_or_b32 v{vD+j}, v{vS+j}, 6, v{vD+j}")
        if j:
            a(f"v_add_u32 v{vT}, {j << 20}, v{vA}")
            a(f"v_or_b32 v{vD+j}, v{vD+j}, v{vT}")
        else:
            a(f"v_or_b32 v{vD+j}, v{vD+j}, v{vA}")
        a(f"v_lshlrev_b32 v{vB+j}, 5, v{vB+j}")
        a(f"v_add_u32 v{vB+j}, {PL}, v{vB+j}")
    a(f"v_mov_b32 v{vU}, 0")
    for j in range(4):
        a(f"s_waitcnt lgkmcnt({3-j})")
        a(f"v_max_u32 v{vU}, v{vU}, v{vK+j}")
        a(f"v_min_u32 v{vK+j}, {CAPK-1}, v{vK+j}")
        a(f"v_lshrrev_b32 v{vT}, 3, v{vK+j}")
        a(f"v_lshl_add_u32 v{vB+j}, v{vT}, 13, v{vB+j}")
        a(f"v_and_b32 v{vT}, 7, v{vK+j}")
        a(f"v_lshl_add_u32 v{vB+j}, v{vT}, 2, v{vB+j}")
    for j in range(4):
        a(f"ds_write_b32 v{vB+j}, v{vD+j}")
    a(f"v_cmp_le_u32 vcc, {CAPK}, v{vU}")
    a(f"s_and_b64 exec, exec, vcc")
    a(f"v_mov_b32 v{vT}, {FL}")
    a(f"ds_write_b32 v{vT}, v{vOne}")
    a(f"s_mov_b64 exec, s[{sEX}:{sEX+1}]")
    a("s_waitcnt lgkmcnt(0)")
    a("s_barrier")
    a(f"v_mov_b32 v{vT}, {FL}")
    a(f"ds_read_b32 v{vU}, v{vT}")
    a(f"v_lshlrev_b32 v{vA}, 2, v0")
    a(f"v_add_u32 v{vA}, {PL}, v{vA}")
    a(f"v_lshrrev_b32 v{vT}, 3, v0")
    a(f"v_mul_u32_u24 v{vT}, {G1*128}, v{vT}")
    a(f"v_and_b32 v{vK}, 7, v0")
    a(f"v_lshl_add_u32 v{vT}, v{vK}, 4, v{vT}")
    a(f"s_lshl_b32 s{sT0}, s2, 7")
    a("s_waitcnt lgkmcnt(0)")
    a(f"v_readfirstlane_b32 s{sT1}, v{vU}")
    a(f"s_cmp_eq_u32 s{sT1}, 0")
    a(f"s_cbranch_scc1 {lbl}_noovf")
    a(f"v_lshlrev_b32 v{vU}, 2, v0")
    a(f"v_add_u32 v{vU}, {CN}, v{vU}")
    a(f"ds_read_b32 v{vU}, v{vU}")
    a(f"v_cmp_gt_u32 vcc, 256, v0")
    a(f"s_and_saveexec_b64 s[{sEX}:{sEX+1}], vcc")
    a("s_waitcnt lgkmcnt(0)")
    a(f"v_cmp_lt_u32 vcc, {CAPK}, v{vU}")
    a(f"s_and_b64 exec, exec, vcc")
    a(f"v_lshlrev_b32 v{vU}, 5, v0")
    a(f"v_add_u32 v{vU}, {PL}, v{vU}")
    for i in range(4):
        a(f"v_mov_b32 v{vF+i}, {OVF_MARK - (1 << 32)}")
    for k in range(3):
        a(f"ds_write_b128 v{vU}, {vr(vF,4)} offset:{k*8192}")
        a(f"ds_write_b128 v{vU}, {vr(vF,4)} offset:{k*8192+16}")
    a(f"s_mov_b64 exec, s[{sEX}:{sEX+1}]")
    a("s_waitcnt lgkmcnt(0)")
    a("s_barrier")
    a.label(f"{lbl}_noovf")
    vO = [v0, v0 + 4, v0 + 12, v0 + 20]
    for k in range(4):
        a(f"ds_read2st64_b32 {vr(vO[k],2)}, v{vA} offset0:{k*8} offset1:{k*8+32}")
        a(f"ds_read_b32 v{vO[k]+2}, v{vA} offset:{k*2048+16384}")
        a(f"v_mov_b32 v{vO[k]+3}, s{sTAG}")
    for k in range(4):
        a(f"s_waitcnt lgkmcnt({6-2*k})")
        a(f"buffer_store_dwordx4 {vr(vO[k],4)}, v{vT}, s[{RWS}:{RWS+3}], s{sT0} offen {store_flags}")
        if k < 3:
            a(f"s_add_u32 s{sT0}, s{sT0}, {64*G1*128}")


def gen_bin_kernel(a):
    a.raw(".globl bin_kernel\n.p2align 8\n.type bin_kernel,@function")
    a.label("bin_kernel")
    a(f"s_cmp_ge_u32 s2, {G1}")
    a("s_cbranch_scc1 bin_end")
    a("s_load_dwordx16 s[4:19], s[0:1], 0")
    a("s_load_dwordx2 s[20:21], s[0:1], 64")
    a(f"s_mov_b32 s{sTAG}, 0x1234567")
    a("s_waitcnt lgkmcnt(0)")
    srd(a, RSRC, S_SRC, E * 4)
    srd(a, RDST, S_DST, E * 4)
    srd(a, RWS, S_WS, CELLS_BYTES)
    emit_bin(a, 0, 4, "bin")
    a.label("bin_end")
    a("s_endpgm")


class Block:
    def __init__(self, a):
        self.a = a
        self.pend = []

    def __call__(self, t):
        ins = Ins(t)
        use = ins.s | ins.d
        last = -1
        for i, dset in enumerate(self.pend):
            if dset & use:
                last = i
        if last >= 0:
            n = len(self.pend) - 1 - last
            self.a(f"s_waitcnt lgkmcnt({n})")
            self.pend = self.pend[last + 1:]
        if ins.is_ds:
            if len(self.pend) >= 15:
                self.a("s_waitcnt lgkmcnt(14)")
                self.pend = self.pend[-14:]
            self.pend.append(ins.d)
        self.a(t)

    def drain(self):
        if self.pend:
            self.a("s_waitcnt lgkmcnt(0)")
            self.pend = []


MF = "v_mfma_f32_32x32x16_bf16"


def gen_main(a):
    V = Regs("v", 1, 256)
    vL = V.alloc("L")
    W1 = V.alloc("W1", 32, 4)
    W3 = V.alloc("W3", 4)
    Q = V.alloc("Q", 8)
    G = V.alloc("G", 16)
    U = V.alloc("U", 16)
    WB = V.alloc("WB", 32)
    AF = V.alloc("AF", 44)
    SF = V.alloc("SF", 8)
    T = [V.alloc("T0", 16), V.alloc("T1", 16)]
    X = V.alloc("X", 8)
    MS = V.alloc("MS", 8)
    XA = V.alloc("XA", 8)
    vEA = V.alloc("EA")
    vLX = V.alloc("LX")
    vSA = V.alloc("SA", 2)
    vST = V.alloc("ST", 2)
    vXC = V.alloc("XC", 2)
    vLI = V.alloc("LI", 2)
    EN = V.alloc("EN", 4, 4)
    E3 = V.alloc("E3")
    REL = V.alloc("REL", 4)
    EB = V.alloc("EB", 2)
    ENT = [EN, EN + 1, EN + 2, E3]
    t0, t1, t2, t3, t4, t5, t6, t7 = [X + i for i in range(8)]
    vH, vM, vG16, vNH, vR4, vC4, vL15, vTW = [MS + i for i in range(8)]

    a.raw(f".globl {NAME}_kernel\n.p2align 8\n.type {NAME}_kernel,@function")
    a.label(f"{NAME}_kernel")
    a("s_cmp_ge_u32 s2, 256")
    a("s_cbranch_scc1 L_end")
    stamp(a, 0)
    a("s_load_dwordx16 s[4:19], s[0:1], 0")
    a("s_load_dwordx2 s[20:21], s[0:1], 64")
    a(f"v_and_b32 v{vL}, 63, v0")
    a(f"v_lshrrev_b32 v{t0}, 6, v0")
    a(f"v_readfirstlane_b32 s{sW}, v{t0}")

    def lane_consts():
        a(f"v_lshrrev_b32 v{vH}, 5, v{vL}")
        a(f"v_and_b32 v{vM}, 31, v{vL}")
        a(f"v_lshrrev_b32 v{vG16}, 4, v{vL}")
        a(f"v_and_b32 v{vNH}, 1, v{vG16}")
        a(f"v_bfe_u32 v{vR4}, v{vL}, 2, 2")
        a(f"v_and_b32 v{vC4}, 3, v{vL}")
        a(f"v_and_b32 v{vL15}, 15, v{vL}")
    lane_consts()
    a(f"s_lshr_b32 s{sG}, s{sW}, 2")
    a(f"s_and_b32 s{sQ}, s{sW}, 3")
    a(f"s_mov_b32 s{sCAP}, {R*32}")
    a(f"s_mov_b32 s{sLCAP}, {LCAP}")
    a(f"s_mov_b32 s{sOVR}, 0")
    a(f"s_mov_b32 s{sC}, {f32(-LOG2E)}")
    a(f"s_mov_b32 s{sC+1}, {f32(-LOG2E)}")
    a(f"s_mov_b32 s{sTAG}, 0x1234567")
    a(f"v_lshlrev_b32 v{t0}, 2, v{vG16}")
    a(f"v_xor_b32 v{t0}, v{t0}, v{vL15}")
    a(f"v_lshlrev_b32 v{t0}, 4, v{t0}")
    a(f"v_lshl_add_u32 v{T[1]}, v{vG16}, 8, v{t0}")
    vWD = T[1]
    a(f"s_and_b32 s{sT0}, s{sQ}, 1")
    a(f"s_lshl_b32 s{sT0}, s{sT0}, 3")
    a(f"v_add_u32 v{t0}, s{sT0}, v{vG16}")
    a(f"v_xor_b32 v{t0}, v{t0}, v{vL15}")
    a(f"v_lshlrev_b32 v{vXC}, 4, v{t0}")
    a(f"v_xor_b32 v{vXC+1}, 64, v{vXC}")
    a(f"s_lshl_b32 s{sM0}, s{sG}, 15")
    a(f"s_lshl_b32 s{sT0}, s{sQ}, 11")
    a(f"s_add_u32 s{sM0}, s{sM0}, s{sT0}")
    a("s_waitcnt lgkmcnt(0)")
    srd(a, RWM, S_WM, 272 * 256)
    srd(a, RX, S_X, N * 256)
    srd(a, RWS, S_WS, CELLS_BYTES)

    def w_dma(rsrd):
        a(f"s_lshl_b32 s{sT0}, s{sW}, 13")
        for half in range(2):
            a(f"s_mov_b32 m0, s{sT0}")
            for k in range(4):
                a(f"buffer_load_dwordx4 v{vWD}, s[{rsrd}:{rsrd+3}], s{sT0} offen offset:{k*1024} lds")
            if half == 0:
                a(f"s_add_u32 s{sT0}, s{sT0}, 4096")
    a.c("---- stage w_msg rows 0..255 (W1, W2)")
    w_dma(RWM)
    a.c("---- W3 rows 256..271: both groups load the same 4 KB (identical bytes)")
    a(f"s_lshl_b32 s{sT0}, s{sQ}, 10")
    a(f"s_add_u32 s{sT0}, s{sT0}, 65536")
    a(f"s_mov_b32 m0, s{sT0}")
    a(f"buffer_load_dwordx4 v{vWD}, s[{RWM}:{RWM+3}], s{sT0} offen lds")
    a.c("---- node tiles")
    a(f"s_lshl_b32 s{sT0}, s{sQ}, 3")
    a(f"v_add_u32 v{t0}, s{sT0}, v{vG16}")
    a(f"v_lshl_or_b32 v{t1}, v{t0}, 17, v{vXC}")
    a(f"v_add_u32 v{t0}, 4, v{t0}")
    a(f"v_lshl_or_b32 v{t2}, v{t0}, 17, v{vXC+1}")
    a(f"s_lshl_b32 s{sT1}, s{sG}, 8")
    a(f"s_add_u32 s{sT1}, s{sT1}, s2")
    a(f"s_lshl_b32 s{sT1}, s{sT1}, 8")
    a(f"s_lshl_b32 s{sT0}, s{sW}, 11")
    a(f"s_add_u32 s{sT0}, s{sT0}, {NT}")
    a(f"s_mov_b32 m0, s{sT0}")
    a(f"buffer_load_dwordx4 v{t1}, s[{RX}:{RX+3}], s{sT1} offen lds")
    a(f"s_add_u32 s{sT0}, s{sT0}, 1024")
    a(f"s_mov_b32 m0, s{sT0}")
    a(f"buffer_load_dwordx4 v{t2}, s[{RX}:{RX+3}], s{sT1} offen lds")

    def load_cells(flags=""):
        a(f"s_mul_i32 s{sT0}, s2, {G1}")
        a(f"s_mul_i32 s{sT1}, s{sW}, 10")
        a(f"s_add_u32 s{sT0}, s{sT0}, s{sT1}")
        a(f"s_lshl_b32 s{sT0}, s{sT0}, 7")
        a(f"v_lshlrev_b32 v{t0}, 4, v{vL}")
        a(f"v_lshlrev_b32 v{t1}, 2, v{vL}")
        a(f"buffer_load_dwordx4 {vr(EN,4)}, v{t0}, s[{RWS}:{RWS+3}], s{sT0} offen {flags}")
        a(f"buffer_load_dword v{E3}, v{t1}, s[{RWS}:{RWS+3}], s{sT0} offen offset:1024 {flags}")
    load_cells()
    srd(a, REA, S_EAP, E * 32)
    srd(a, RSRC, S_SRC, E * 4)
    srd(a, RDST, S_DST, E * 4)
    srd(a, RWU, S_WU, 256 * 256)
    srd(a, ROUT, S_OUT, N * 256)

    def lds_init(with_misc):
        z = AF
        for i in range(4):
            a(f"v_mov_b32 v{z+i}, 0")
            a(f"v_mov_b32 v{z+4+i}, 0x7fffff")
        a(f"v_lshlrev_b32 v{z+8}, 4, v0")
        a(f"v_add_u32 v{z+8}, {ST}, v{z+8}")
        for k in range(6):
            a(f"ds_write_b128 v{z+8}, {vr(z,4)} offset:{k*8192}")
        a(f"ds_write_b128 v{z+8}, {vr(z+4,4)} offset:{LB-ST}")
        a(f"v_cmp_gt_u32 vcc, {272 if with_misc else 256}, v0")
        a(f"s_and_saveexec_b64 s[{sEX}:{sEX+1}], vcc")
        a(f"ds_write_b128 v{z+8}, {vr(z,4)} offset:{6*8192}")
        a(f"v_cmp_gt_u32 vcc, 32, v0")
        a(f"s_and_b64 exec, exec, vcc")
        a(f"ds_write_b128 v{z+8}, {vr(z+4,4)} offset:{LB-ST+8192}")
        a(f"s_mov_b64 exec, s[{sEX}:{sEX+1}]")
    lds_init(True)

    a(f"v_and_b32 v{t0}, 15, v{vM}")
    a(f"v_xor_b32 v{t0}, v{t0}, v{vH}")
    a(f"v_lshlrev_b32 v{t0}, 4, v{t0}")
    a(f"v_lshl_add_u32 v{t0}, v{vM}, 8, v{t0}")
    a(f"s_lshl_b32 s{sT0}, s{sG}, 15")
    a(f"v_add_u32 v{XA}, s{sT0}, v{t0}")
    for s in range(1, 8):
        a(f"v_xor_b32 v{XA+s}, {s*32}, v{XA}")
    a(f"v_lshrrev_b32 v{t0}, 1, v{vC4}")
    a(f"v_lshl_add_u32 v{t0}, v{vNH}, 1, v{t0}")
    a(f"s_lshl_b32 s{sT0}, s{sQ}, 2")
    a(f"v_add_u32 v{t0}, s{sT0}, v{t0}")
    a(f"v_lshlrev_b32 v{t1}, 2, v{vR4}")
    a(f"v_xor_b32 v{t0}, v{t0}, v{t1}")
    a(f"v_lshlrev_b32 v{t0}, 4, v{t0}")
    a(f"v_and_b32 v{t1}, 1, v{vC4}")
    a(f"v_lshl_add_u32 v{t0}, v{t1}, 3, v{t0}")
    a(f"v_lshl_add_u32 v{t1}, v{vH}, 3, v{vR4}")
    a(f"v_lshl_add_u32 v{vTW}, v{t1}, 8, v{t0}")
    a(f"v_and_b32 v{t0}, 0x13, v{vM}")
    a(f"v_and_b32 v{t1}, 4, v{vM}")
    a(f"v_lshl_or_b32 v{t0}, v{t1}, 1, v{t0}")
    a(f"v_and_b32 v{t1}, 8, v{vM}")
    a(f"v_lshrrev_b32 v{t1}, 1, v{t1}")
    a(f"v_or_b32 v{t0}, v{t0}, v{t1}")
    a(f"v_and_b32 v{t1}, 15, v{t0}")
    a(f"v_xor_b32 v{t1}, v{t1}, v{vH}")
    a(f"v_lshlrev_b32 v{t1}, 4, v{t1}")
    a(f"v_lshl_add_u32 v{t2}, v{t0}, 8, v{t1}")
    a(f"s_lshl_b32 s{sT0}, s{sG}, 13")
    a(f"s_add_u32 s{sT0}, s{sT0}, {NT}")
    a(f"v_add_u32 v{t2}, s{sT0}, v{t2}")
    a(f"v_add_u32 v{t3}, 65536, v{vTW}")
    for i in range(16):
        a(f"v_mov_b32 v{G+i}, 0")
    a("s_waitcnt vmcnt(2) lgkmcnt(0)")
    a("s_barrier")
    stamp(a, 1)
    a.c("---- weights -> registers, Q")
    b = Block(a)
    W2t = WB
    for s in range(8):
        b(f"v_xor_b32 v{t4}, {s*32}, v{t2}")
        b(f"ds_read_b128 {vr(AF+4*s,4)}, v{t4}")
        for jj in range(2):
            b(f"ds_read_b64_tr_b16 {vr(W2t+4*s+2*jj,2)}, v{vTW} offset:{32768+s*4096+jj*1024}")
    for s in range(8):
        b(f"{MF} {vr(T[0],16)}, {vr(AF+4*s,4)}, {vr(W2t+4*s,4)}, {'0' if s == 0 else vr(T[0],16)}")
        for jj in range(2):
            b(f"ds_read_b64_tr_b16 {vr(W1+4*s+2*jj,2)}, v{vTW} offset:{s*4096+jj*1024}")
    for jj in range(2):
        b(f"ds_read_b64_tr_b16 {vr(W3+2*jj,2)}, v{t3} offset:{jj*1024}")
    b.drain()
    a("s_barrier")
    w_dma(RWU)
    for i in range(36):
        w = W1 + i
        a(f"v_lshlrev_b32 v{t0}, 16, v{w}")
        a(f"v_and_b32 v{t1}, 0xffff0000, v{w}")
        a(f"v_mul_f32 v{t0}, s{sC}, v{t0}")
        a(f"v_mul_f32 v{t1}, s{sC}, v{t1}")
        a(f"v_cvt_pk_bf16_f32 v{w}, v{t0}, v{t1}")
    for i in range(8):
        a(f"v_mul_f32 v{t0}, s{sC}, v{T[0]+2*i}")
        a(f"v_mul_f32 v{t1}, s{sC}, v{T[0]+2*i+1}")
        a(f"v_cvt_pk_bf16_f32 v{Q+i}, v{t0}, v{t1}")
    a(f"v_and_b32 v{t0}, 1, v{vC4}")
    a(f"v_lshl_add_u32 v{t0}, v{t0}, 1, v{vNH}")
    a(f"s_lshl_b32 s{sT0}, s{sQ}, 2")
    a(f"v_add_u32 v{t0}, s{sT0}, v{t0}")
    a(f"v_lshlrev_b32 v{t1}, 2, v{vR4}")
    a(f"v_xor_b32 v{t0}, v{t0}, v{t1}")
    a(f"v_lshlrev_b32 v{t0}, 4, v{t0}")
    a(f"v_lshrrev_b32 v{t1}, 1, v{vC4}")
    a(f"v_lshl_add_u32 v{t0}, v{t1}, 3, v{t0}")
    a(f"v_lshl_add_u32 v{t1}, v{vH}, 3, v{vR4}")
    a(f"v_lshl_add_u32 v{t2}, v{t1}, 8, v{t0}")
    a(f"v_lshl_add_u32 v{t1}, v{vH}, 2, v{vR4}")
    a(f"v_lshl_add_u32 v{t3}, v{t1}, 8, v{t0}")
    a(f"s_mul_i32 s{sT0}, s{sG}, {8192-32768}")
    a(f"s_add_u32 s{sT0}, s{sT0}, {NT}")
    a("s_waitcnt vmcnt(0)")
    a("s_barrier")
    stamp(a, 2)
    b = Block(a)
    WT = T[0]
    for s in range(8):
        b(f"v_add_u32 v{t4}, s{sT0}, v{XA+s}")
        b(f"ds_read_b128 {vr(AF+4*s,4)}, v{t4}")
        for jj in range(2):
            b(f"ds_read_b64_tr_b16 {vr(WT+4*s+2*jj,2)}, v{t2} offset:{s*4096+jj*1024}")
    for s in range(8):
        b(f"{MF} {vr(U,16)}, {vr(WT+4*s,4)}, {vr(AF+4*s,4)}, {'0' if s == 0 else vr(U,16)}")
        for jj in range(2):
            b(f"ds_read_b64_tr_b16 {vr(WB+4*s+2*jj,2)}, v{t3} offset:{32768+s*4096+jj*2048}")
    b.drain()

    a.c("---- first source: cells")
    a(f"s_mul_i32 s{sT0}, s{sW}, 10")
    a(f"v_lshrrev_b32 v{t0}, 3, v{vL}")
    a(f"v_add_u32 v{t0}, s{sT0}, v{t0}")
    a(f"v_add_u32 v{t1}, s{sT0}, v{vH}")
    a(f"v_add_u32 v{t1}, 8, v{t1}")
    a(f"v_mul_u32_u24 v{EB}, {CH}, v{t0}")
    a(f"v_mul_u32_u24 v{EB+1}, {CH}, v{t1}")
    a(f"v_cmp_eq_u32 vcc, 3, v{vC4}")
    a(f"v_cndmask_b32 v{E3}, v{E3}, -1, vcc")
    a(f"v_cmp_eq_u32 vcc, {OVF_MARK - (1<<32)}, v{EN}")
    a(f"v_cmp_eq_u32 s[{sT1}:{sT1+1}], {OVF_MARK - (1<<32)}, v{E3}")
    a(f"s_or_b64 s[{sEX}:{sEX+1}], vcc, s[{sT1}:{sT1+1}]")
    a("s_cbranch_scc0 L_count")
    a(f"s_mov_b64 s[{sEX}:{sEX+1}], exec")
    for (msk, ch) in (("vcc", t0), (f"s[{sT1}:{sT1+1}]", t1)):
        a(f"s_mov_b64 exec, {msk}")
        a(f"v_lshrrev_b32 v{t2}, 5, v{ch}")
        a(f"v_lshlrev_b32 v{t2}, 2, v{t2}")
        a(f"v_add_u32 v{t2}, {OVF}, v{t2}")
        a(f"v_lshlrev_b32_e64 v{t3}, v{ch}, 1")
        a(f"ds_or_b32 v{t2}, v{t3}")
    a(f"s_mov_b64 exec, s[{sEX}:{sEX+1}]")

    a.label("L_count")
    a.c("---- count + rank the 4 entry slots")
    sh = [AF + i for i in range(4)]
    run = [AF + 4 + i for i in range(5)]
    a(f"v_mov_b32 v{run[0]}, 0")
    for j in range(4):
        a(f"v_lshlrev_b32 v{sh[j]}, 4, v{ENT[j]}")
        a(f"v_cmp_le_i32 vcc, 0, v{ENT[j]}")
        a(f"v_lshlrev_b32_e64 v{t0}, v{sh[j]}, 1")
        a(f"v_cndmask_b32 v{t0}, 0, v{t0}, vcc")
        a(f"v_add_u32 v{run[j+1]}, v{run[j]}, v{t0}")
    a(f"v_mov_b32 v{t1}, v{run[4]}")
    for k in (1, 2, 4, 8):
        a(f"v_add_u32_dpp v{t1}, v{t1}, v{t1} row_shr:{k} row_mask:0xf bank_mask:0xf bound_ctrl:0")
    a(f"v_add_u32_dpp v{t1}, v{t1}, v{t1} row_bcast:15 row_mask:0xa bank_mask:0xf")
    a(f"v_add_u32_dpp v{t1}, v{t1}, v{t1} row_bcast:31 row_mask:0xc bank_mask:0xf")
    a(f"v_mov_b32 v{t2}, {CNT}")
    a(f"s_mov_b64 s[{sEX}:{sEX+1}], exec")
    a("s_mov_b32 exec_lo, 0")
    a("s_brev_b32 exec_hi, 1")
    a(f"ds_add_rtn_u32 v{t3}, v{t2}, v{t1}")
    a(f"s_mov_b64 exec, s[{sEX}:{sEX+1}]")
    a(f"v_sub_u32 v{t1}, v{t1}, v{run[4]}")
    a("s_waitcnt lgkmcnt(0)")
    a(f"v_readlane_b32 s{sT0}, v{t3}, 63")
    a(f"v_add_u32 v{t1}, s{sT0}, v{t1}")
    for j in range(4):
        a(f"v_add_u32 v{t0}, v{t1}, v{run[j]}")
        a(f"v_bfe_u32 v{t0}, v{t0}, v{sh[j]}, 16")
        a(f"v_ashrrev_i32 v{t2}, 31, v{ENT[j]}")
        a(f"v_or_b32 v{REL+j}, v{t0}, v{t2}")
    a(f"s_mov_b32 s{sRC}, 0")

    a.label("L_round")
    a.c("---- write list + one-hot rows for entries of this round")
    a(f"v_mov_b32 v{t6}, {ST}")
    a(f"v_mov_b32 v{t7}, 0x3f80")
    a(f"v_mov_b32 v{t5}, {LB}")
    for j in range(4):
        a(f"v_cmp_gt_u32 vcc, s{sCAP}, v{REL+j}")
        a(f"s_and_saveexec_b64 s[{sEX}:{sEX+1}], vcc")
        a(f"s_cbranch_execz L_wskip{j}")
        a(f"v_bfe_u32 v{t0}, v{ENT[j]}, 6, 14")
        a(f"v_lshrrev_b32 v{t1}, 20, v{ENT[j]}")
        a(f"v_add_u32 v{t1}, v{t1}, v{EB + (1 if j == 3 else 0)}")
        a(f"v_and_b32 v{t2}, 1, v{ENT[j]}")
        a(f"v_mad_u32_u24 v{t3}, v{t2}, s{sLCAP}, v{REL+j}")
        a(f"v_lshl_add_u32 v{t3}, v{t3}, 3, v{t5}")
        a(f"ds_write_b64 v{t3}, {vr(t0,2)}")
        a(f"v_mad_u32_u24 v{t2}, v{t2}, s{sCAP}, v{REL+j}")
        a(f"v_and_or_b32 v{t3}, v{ENT[j]}, 62, v{t6}")
        a(f"v_lshlrev_b32 v{t4}, 2, v{REL+j}")
        a(f"v_and_b32 v{t4}, 0x30, v{t4}")
        a(f"v_xor_b32 v{t3}, v{t3}, v{t4}")
        a(f"v_lshl_add_u32 v{t3}, v{t2}, 6, v{t3}")
        a(f"ds_write_b16 v{t3}, v{t7}")
        a.label(f"L_wskip{j}")
        a(f"s_mov_b64 exec, s[{sEX}:{sEX+1}]")
        a(f"v_subrev_u32 v{REL+j}, s{sCAP}, v{REL+j}")
    lane_consts()
    a(f"s_mul_i32 s{sT0}, s{sG}, {R*1024}")
    a(f"s_add_u32 s{sT0}, s{sT0}, {EA}")
    a(f"v_bfe_u32 v{t0}, v{vM}, 3, 1")
    a(f"v_xor_b32 v{t0}, v{t0}, v{vH}")
    a(f"v_lshlrev_b32 v{t0}, 4, v{t0}")
    a(f"v_lshl_add_u32 v{t0}, v{vM}, 5, v{t0}")
    a(f"v_add_u32 v{vEA}, s{sT0}, v{t0}")
    a(f"s_mul_i32 s{sT1}, s{sG}, {R*2048}")
    a(f"s_add_u32 s{sT1}, s{sT1}, {ST}")
    a(f"v_bfe_u32 v{t0}, v{vM}, 2, 2")
    a(f"v_xor_b32 v{t0}, v{t0}, v{vH}")
    a(f"v_lshlrev_b32 v{t0}, 4, v{t0}")
    a(f"v_lshl_add_u32 v{t0}, v{vM}, 6, v{t0}")
    a(f"v_add_u32 v{vSA}, s{sT1}, v{t0}")
    a(f"v_xor_b32 v{vSA+1}, 32, v{vSA}")
    a(f"v_lshrrev_b32 v{t0}, 1, v{vC4}")
    a(f"v_lshl_add_u32 v{t0}, v{vNH}, 1, v{t0}")
    a(f"v_xor_b32 v{t0}, v{t0}, v{vH}")
    a(f"v_lshlrev_b32 v{t0}, 4, v{t0}")
    a(f"v_and_b32 v{t1}, 1, v{vC4}")
    a(f"v_lshl_add_u32 v{t0}, v{t1}, 3, v{t0}")
    a(f"v_lshl_add_u32 v{t1}, v{vH}, 2, v{vR4}")
    a(f"v_lshl_add_u32 v{t0}, v{t1}, 6, v{t0}")
    a(f"v_add_u32 v{vST}, s{sT1}, v{t0}")
    a(f"v_xor_b32 v{vST+1}, 32, v{vST}")
    a(f"v_add_u32 v{vST+1}, 512, v{vST+1}")
    a(f"s_mul_i32 s{sT1}, s{sG}, {LCAP*8}")
    a(f"s_add_u32 s{sT1}, s{sT1}, {LB}")
    a(f"s_lshl_b32 s{sT2}, s{sQ}, 6")
    a(f"s_add_u32 s{sT2}, s{sT2}, s{sT1}")
    a(f"v_lshlrev_b32 v{t0}, 3, v{vG16}")
    a(f"v_add_u32 v{vLX}, s{sT2}, v{t0}")
    a(f"v_lshrrev_b32 v{t0}, 1, v{vL}")
    a(f"s_lshl_b32 s{sT2}, s{sQ}, 8")
    a(f"s_add_u32 s{sT2}, s{sT2}, s{sT1}")
    a(f"v_lshl_add_u32 v{t2}, v{t0}, 3, s{sT2}")
    a(f"v_xor_b32 v{t3}, v{vL}, v{vG16}")
    a(f"v_and_b32 v{t3}, 1, v{t3}")
    a(f"v_lshlrev_b32 v{t3}, 4, v{t3}")
    a(f"v_mov_b32 v{t4}, {CNT}")
    a("s_waitcnt lgkmcnt(0)")
    a("s_barrier")
    stamp(a, 3)
    LE = AF
    LXV = AF + 4
    a(f"ds_read_b128 {vr(AF+12,4)}, v{t4}")
    for k in range(4):
        a(f"ds_read_b32 v{LE+k}, v{t2} offset:{4+k*1024}")
    for k in range(4):
        a(f"ds_read2_b32 {vr(LXV+2*k,2)}, v{vLX} offset0:{k*64} offset1:{k*64+8}")
    a(f"v_add_u32 v{vLX}, 1024, v{vLX}")
    a("s_waitcnt lgkmcnt(8)")
    a(f"s_cmp_lg_u32 s{sRC}, 0")
    a("s_cbranch_scc1 L_havetot")
    a(f"v_readfirstlane_b32 s{sNA}, v{AF+12}")
    a(f"s_lshr_b32 s{sNB}, s{sNA}, 16")
    a(f"s_and_b32 s{sNA}, s{sNA}, 0xffff")
    a(f"s_mov_b32 s{sRC}, 1")
    a(f"s_cmp_lg_u32 s{sOVR}, 0")
    a("s_cbranch_scc1 L_havetot")
    for k in range(3):
        a(f"v_readfirstlane_b32 s{sOV+k}, v{AF+13+k}")
    a(f"s_mov_b32 s{sOVR}, 1")
    a.label("L_havetot")
    a(f"s_max_i32 s{sT1}, s{sNA}, s{sNB}")
    a(f"s_cmp_eq_u32 s{sG}, 0")
    a(f"s_cselect_b32 s{sT2}, s{sNA}, s{sNB}")
    for r_, d_ in ((sT1, sTMAX), (sT2, sTG)):
        a(f"s_max_i32 s{r_}, s{r_}, 0")
        a(f"s_add_u32 s{r_}, s{r_}, 31")
        a(f"s_lshr_b32 s{r_}, s{r_}, 5")
        a(f"s_min_u32 s{d_}, s{r_}, {R}")
    a(f"s_sub_i32 s{sNA}, s{sNA}, {R*32}")
    a(f"s_sub_i32 s{sNB}, s{sNB}, {R*32}")
    a(f"s_sub_u32 s{sTMAX}, s{sTMAX}, s{sTG}")
    a(f"s_cmp_eq_u32 s{sTG}, 0")
    a("s_cbranch_scc1 L_extra")
    a.c("---- e_attr tiles w', w'+4, ...")
    a(f"s_lshl_b32 s{sT1}, s{sQ}, 10")
    a(f"s_add_u32 s{sT0}, s{sT0}, s{sT1}")
    a(f"s_mov_b32 s{sT1}, s{sQ}")
    for k in range(4):
        a(f"s_cmp_ge_u32 s{sT1}, s{sTG}")
        a("s_cbranch_scc1 L_edone")
        a(f"s_waitcnt lgkmcnt({7-k})")
        a(f"v_lshl_or_b32 v{LE+k}, v{LE+k}, 5, v{t3}")
        a(f"s_mov_b32 m0, s{sT0}")
        a(f"buffer_load_dwordx4 v{LE+k}, s[{REA}:{REA+3}], 0 offen lds")
        if k < 3:
            a(f"s_add_u32 s{sT0}, s{sT0}, 4096")
            a(f"s_add_u32 s{sT1}, s{sT1}, 4")
    a.label("L_edone")
    for k in range(4):
        a(f"s_waitcnt lgkmcnt({3-k})")
        for q in range(2):
            a(f"v_lshl_or_b32 v{LXV+2*k+q}, v{LXV+2*k+q}, 8, v{vXC+q}")
            a(f"s_add_u32 m0, s{sM0}, {k*8192+q*1024}")
            a(f"buffer_load_dwordx4 v{LXV+2*k+q}, s[{RX}:{RX+3}], 0 offen lds")
    a("s_waitcnt vmcnt(6)")
    a("s_barrier")
    stamp(a, 4)

    def l_reads(slot, tile):
        r = []
        for s in range(8):
            r.append(f"ds_read_b128 {vr(AF+4*s,4)}, v{XA+s} offset:{slot*8192}")
        r.append(f"ds_read_b128 {vr(AF+36,4)}, v{vSA} offset:{tile*2048}")
        r.append(f"ds_read_b128 {vr(AF+40,4)}, v{vSA+1} offset:{tile*2048}")
        r.append(f"ds_read_b128 {vr(AF+32,4)}, v{vEA} offset:{tile*1024}")
        return r

    def l_mfmas(Tn):
        m = []
        for s in range(8):
            m.append(f"{MF} {vr(Tn,16)}, {vr(AF+4*s,4)}, {vr(W1+4*s,4)}, {'0' if s == 0 else vr(Tn,16)}")
        m.append(f"{MF} {vr(Tn,16)}, {vr(AF+36,4)}, {vr(Q,4)}, {vr(Tn,16)}")
        m.append(f"{MF} {vr(Tn,16)}, {vr(AF+40,4)}, {vr(Q+4,4)}, {vr(Tn,16)}")
        m.append(f"{MF} {vr(Tn,16)}, {vr(AF+32,4)}, {vr(W3,4)}, {vr(Tn,16)}")
        return m

    def s_reads(tile):
        return [f"ds_read_b64_tr_b16 {vr(SF+4*s+2*jj,2)}, v{vST+jj} offset:{tile*2048+s*1024}"
                for s in range(2) for jj in range(2)]

    def v_ops(Tc):
        ops = []
        for q in range(4):
            x = X + 4 * (q & 1)
            for i in range(4):
                ops.append((f"v_exp_f32 v{x+i}, v{Tc+4*q+i}", 8))
            for i in range(4):
                ops.append((f"v_add_f32 v{x+i}, 1.0, v{x+i}", 4))
            for i in range(4):
                ops.append((f"v_rcp_f32 v{x+i}, v{x+i}", 8))
            for i in range(4):
                ops.append((f"v_mul_f32 v{x+i}, v{x+i}, v{Tc+4*q+i}", 4))
            for k in range(2):
                ops.append((f"v_cvt_pk_bf16_f32 v{MS+2*q+k}, v{x+2*k}, v{x+2*k+1}", 4))
        return ops

    def agg(s):
        return f"{MF} {vr(G,16)}, {vr(MS+4*s,4)}, {vr(SF+4*s,4)}, {vr(G,16)}"

    a.c("---- L(0)")
    b = Block(a)
    for r_ in l_reads(0, 0):
        b(r_)
    for m_ in l_mfmas(T[0]):
        b(m_)
    a(f"s_mov_b32 s{sI}, 1")

    a.raw(".p2align 6")
    a.label("L_loop")
    for u in range(4):
        a(f"s_cmp_ge_u32 s{sI}, s{sTG}")
        a(f"s_cbranch_scc1 L_exit{u}")
        a("s_waitcnt vmcnt(4)")
        a("s_barrier")
        b = Block(a)
        rd = l_reads((u + 1) & 3, u + 1)
        mf = l_mfmas(T[(u + 1) & 1])
        sr_ = s_reads(u)
        vo = v_ops(T[u & 1])
        ev = {}

        def at(p, t):
            ev.setdefault(p, []).append(t)
        at(0, f"ds_read2_b32 {vr(vLI,2)}, v{vLX} offset0:{u*64} offset1:{u*64+8}")
        for i in range(4):
            at(0, rd[i])
        for i in range(4, 11):
            at(i - 3, rd[i])
        for i in range(4):
            at(8 + i, sr_[i])
        for q in range(2):
            at(4, f"v_lshl_or_b32 v{vLI+q}, v{vLI+q}, 8, v{vXC+q}")
        for q in range(2):
            at(5, f"s_add_u32 m0, s{sM0}, {u*8192+q*1024}")
            at(5, f"buffer_load_dwordx4 v{vLI+q}, s[{RX}:{RX+3}], 0 offen lds")
        cum, acc = [], 0
        for (_, c) in vo:
            cum.append(acc)
            acc += c
        seq = mf[:5] + [agg(0)] + mf[5:]
        start, step = 48, 30
        pos_prev = 0
        for k, m_ in enumerate(seq):
            target = start + k * step
            p = next((i for i, c in enumerate(cum) if c >= target), len(vo) - 1)
            if m_ == agg(0):
                p = max(p, 37)
            p = max(p, pos_prev)
            pos_prev = p
            at(p, m_)
        for p, (t, c) in enumerate(vo):
            for t2_ in ev.get(p, []):
                b(t2_)
            b(t)
        if u == 3:
            b(f"v_add_u32 v{vEA}, 4096, v{vEA}")
            b(f"v_add_u32 v{vLX}, 1024, v{vLX}")
            for k in range(2):
                b(f"v_add_u32 v{vSA+k}, 8192, v{vSA+k}")
                b(f"v_add_u32 v{vST+k}, 8192, v{vST+k}")
        b(f"s_add_u32 s{sI}, s{sI}, 1")
        b(agg(1))
        assert not b.pend
    a("s_branch L_loop")

    for u in (2, 0, 3, 1):
        a.label(f"L_exit{u}")
        if u >= 2:
            for k in range(2):
                a(f"v_add_u32 v{vST+k}, 4096, v{vST+k}")
            continue
        a("s_nop 7")
        b = Block(a)
        for t in s_reads(u):
            b(t)
        vo = v_ops(T[u & 1])
        for p, (t, c) in enumerate(vo):
            if p == 38:
                b(agg(0))
            b(t)
        b(agg(1))
        if u == 0:
            a("s_branch L_extra")

    a.label("L_extra")
    a(f"s_cmp_eq_u32 s{sTMAX}, 0")
    a("s_cbranch_scc1 L_rdone")
    a("s_barrier")
    a(f"s_sub_u32 s{sTMAX}, s{sTMAX}, 1")
    a("s_branch L_extra")
    a.label("L_rdone")
    stamp(a, 5)
    a(f"s_max_i32 s{sT0}, s{sNA}, s{sNB}")
    a(f"s_cmp_gt_i32 s{sT0}, 0")
    a("s_cbranch_scc1 L_more")
    a(f"s_or_b32 s{sT0}, s{sOV}, s{sOV+1}")
    a(f"s_or_b32 s{sT0}, s{sT0}, s{sOV+2}")
    a("s_cbranch_scc1 L_rescan")

    a.c("---- epilogue")
    a(f"s_mov_b32 s{sT0}, {f32(-0.6931471805599453)}")
    a("s_nop 7")
    for i in range(8):
        a(f"v_mul_f32 v{G+2*i}, s{sT0}, v{G+2*i}")
        a(f"v_mul_f32 v{G+2*i+1}, s{sT0}, v{G+2*i+1}")
        a(f"v_cvt_pk_bf16_f32 v{MS+i}, v{G+2*i}, v{G+2*i+1}")
    a(f"s_lshl_b32 s{sT1}, s{sG}, 13")
    a(f"s_add_u32 s{sT1}, s{sT1}, {AG}")
    a(f"v_lshl_add_u32 v{t0}, v{vL}, 4, s{sT1}")
    a(f"s_lshl_b32 s{sT2}, s{sQ}, 11")
    a(f"v_add_u32 v{t1}, s{sT2}, v{t0}")
    a(f"ds_write_b128 v{t1}, {vr(MS,4)}")
    a(f"ds_write_b128 v{t1}, {vr(MS+4,4)} offset:1024")
    a(f"v_and_b32 v{t2}, 31, v{vL}")
    a(f"v_lshlrev_b32 v{t2}, 17, v{t2}")
    a(f"v_and_b32 v{t3}, 32, v{vL}")
    a(f"v_or_b32 v{t2}, v{t2}, v{t3}")
    a(f"s_lshl_b32 s{sT1}, s{sG}, 8")
    a(f"s_add_u32 s{sT1}, s{sT1}, s2")
    a(f"s_lshl_b32 s{sT1}, s{sT1}, 8")
    a(f"s_lshl_b32 s{sT2}, s{sQ}, 6")
    a(f"s_add_u32 s{sT1}, s{sT1}, s{sT2}")
    a("s_waitcnt lgkmcnt(0)")
    a("s_barrier")
    b = Block(a)
    for f in range(8):
        b(f"ds_read_b128 {vr(AF+4*f,4)}, v{t0} offset:{f*1024}")
    for f in range(8):
        b(f"{MF} {vr(U,16)}, {vr(WB+4*f,4)}, {vr(AF+4*f,4)}, {vr(U,16)}")
    Y = T[0]
    for i in range(16):
        a(f"v_mul_f32 v{Y+i}, s{sC}, v{U+i}")
    for i in range(16):
        a(f"v_exp_f32 v{Y+i}, v{Y+i}")
    for i in range(16):
        a(f"v_add_f32 v{Y+i}, 1.0, v{Y+i}")
    for i in range(16):
        a(f"v_rcp_f32 v{Y+i}, v{Y+i}")
    for i in range(16):
        a(f"v_mul_f32 v{Y+i}, v{Y+i}, v{U+i}")
    for i in range(8):
        a(f"v_cvt_pk_bf16_f32 v{MS+i}, v{Y+2*i}, v{Y+2*i+1}")
    a(f"buffer_store_dwordx4 {vr(MS,4)}, v{t2}, s[{ROUT}:{ROUT+3}], s{sT1} offen")
    a(f"buffer_store_dwordx4 {vr(MS+4,4)}, v{t2}, s[{ROUT}:{ROUT+3}], s{sT1} offen offset:16")
    if Opt.stamps:
        a("s_waitcnt vmcnt(0)")
        stamp(a, 6)
        a("s_waitcnt lgkmcnt(0)")
        a(f"s_mov_b32 s{RWS+2}, 0x10000000")
        a(f"s_lshl_b32 s{sT0}, s2, 3")
        a(f"s_add_u32 s{sT0}, s{sT0}, s{sW}")
        a(f"s_lshl_b32 s{sT0}, s{sT0}, 6")
        a(f"s_add_u32 s{sT0}, s{sT0}, {1<<22}")
        a(f"v_mov_b32 v{t0}, 0")
        for k in range(8):
            a(f"v_mov_b32 v{AF+k}, s{sST+2*k}")
        a(f"buffer_store_dwordx4 {vr(AF,4)}, v{t0}, s[{RWS}:{RWS+3}], s{sT0} offen")
        a(f"buffer_store_dwordx4 {vr(AF+4,4)}, v{t0}, s[{RWS}:{RWS+3}], s{sT0} offen offset:16")
    a.label("L_end")
    a("s_endpgm")

    a.c("---- slow paths")
    a.label("L_more")
    a("s_waitcnt vmcnt(0) lgkmcnt(0)")
    a("s_barrier")
    lds_init(False)
    a("s_waitcnt lgkmcnt(0)")
    a("s_barrier")
    a("s_branch L_round")

    a.label("L_rescan")
    for k in range(3):
        a(f"s_ff1_i32_b32 s{sT0}, s{sOV+k}")
        a(f"s_cmp_lt_i32 s{sT0}, 0")
        a(f"s_cbranch_scc1 L_rs{k}")
        a(f"s_bitset0_b32 s{sOV+k}, s{sT0}")
        a(f"s_add_u32 s{sT0}, s{sT0}, {32*k}")
        a("s_branch L_rsgo")
        a.label(f"L_rs{k}")
    a.label("L_rsgo")
    a(f"s_mul_i32 s{sT1}, s{sT0}, {CH}")
    a(f"v_mov_b32 v{EB}, s{sT1}")
    a(f"v_mov_b32 v{EB+1}, s{sT1}")
    a(f"s_lshl_b32 s{sT1}, s{sT1}, 2")
    a(f"v_lshlrev_b32 v{t0}, 4, v0")
    a("s_waitcnt vmcnt(0) lgkmcnt(0)")
    a(f"buffer_load_dwordx4 {vr(T[0],4)}, v{t0}, s[{RDST}:{RDST+3}], s{sT1} offen")
    a(f"buffer_load_dwordx4 {vr(T[0]+4,4)}, v{t0}, s[{RSRC}:{RSRC+3}], s{sT1} offen")
    a("s_barrier")
    lds_init(False)
    a(f"v_mov_b32 v{t1}, {CNT}")
    a(f"ds_write_b32 v{t1}, v{AF}")
    a("s_waitcnt vmcnt(0)")
    a(f"v_lshlrev_b32 v{t1}, 22, v0")
    a(f"v_mov_b32 v{t3}, {CH//4}")
    for j in range(4):
        a(f"v_lshrrev_b32 v{t2}, 8, v{T[0]+j}")
        a(f"v_lshl_or_b32 v{t2}, v{T[0]+4+j}, 6, v{t2}")
        a(f"v_add_u32 v{t4}, {j << 20}, v{t1}")
        a(f"v_or_b32 v{t2}, v{t2}, v{t4}")
        a(f"v_and_b32 v{t4}, 255, v{T[0]+j}")
        a(f"v_cmp_eq_u32 vcc, s2, v{t4}")
        a(f"v_cndmask_b32 v{t2}, -1, v{t2}, vcc")
        a(f"v_cmp_gt_u32 vcc, v{t3}, v0")
        a(f"v_cndmask_b32 v{ENT[j]}, -1, v{t2}, vcc")
    a("s_waitcnt lgkmcnt(0)")
    a("s_barrier")
    a("s_branch L_count")
    return V


def build(opt_mode="two", stamps=False):
    Opt.mode, Opt.stamps = opt_mode, stamps
    a = Asm()
    hdr = open("cdna_kernels/%s.s.ref" % NAME).read().split("; Override")[0]
    a.raw(hdr.rstrip())
    a.raw(f"; @launch kernel=bin_kernel grid=({G1},1,1) block=(512,1,1) lds=26624")
    a.raw(f"; @launch kernel={NAME}_kernel grid=(256,1,1) block=(512,1,1) lds={LDS}")
    a.raw('.amdgcn_target "amdgcn-amd-amdhsa--gfx950"\n.text')
    gen_bin_kernel(a)
    V = gen_main(a)
    a.raw('.section .rodata,"a"')
    for k, nv in (("bin_kernel", 40), (NAME + "_kernel", 256)):
        a.raw(f""".p2align 6
.amdhsa_kernel {k}
  .amdhsa_next_free_vgpr {nv}
  .amdhsa_next_free_sgpr 96
  .amdhsa_accum_offset {nv}
  .amdhsa_group_segment_fixed_size 0
  .amdhsa_kernarg_size 72
  .amdhsa_user_sgpr_count 2
  .amdhsa_user_sgpr_kernarg_segment_ptr 1
  .amdhsa_system_sgpr_workgroup_id_x 1
.end_amdhsa_kernel""")
    return a, V


if __name__ == "__main__":
    out = sys.argv[1]
    a, V = build(stamps="stamps" in sys.argv[2:])
    open(out, "w").write(a.text())
    print("vgprs used:", V.next)
    for (ln, pad, t) in a.log:
        print("nop", pad, "before line", ln, t)
```

```python
import struct
import sys
from asmlib import Asm, Ins, Regs, vr, sr

NAME = "standalone__mpnn_edge_mlp__graph"
N, E = 10000, 160000
G1, CH, CAPK = 80, 2000, 24
NPW = 157
R = 13
EA = 65536
XT = EA
W3L = EA + 22528
ST = EA + 2 * R * 1024
LB = ST + 2 * R * 2048
LCAP = 512
NT = LB + 2 * LCAP * 8
MISC = NT - 16
LDS = 163840
assert NT + 10240 == LDS
SCR = 0
CNT = MISC
OVF = MISC + 4
WS_FLAGS = 4096
WS_CELLS = 32768
FSH = 7
WS_FR = 3 << 20
WS_P = (3 << 20) + 65536
WS_SIZE = 8 << 20
WS_STAMP = 7 << 20
OVF_MARK = -2
LOG2E = 1.4426950408889634
SPIN = 200000


def f32(x):
    return "0x%08x" % struct.unpack("<I", struct.pack("<f", x))[0]


class Opt:
    stamps = False
    cycst = False
    exp = set()


RX, REA, RSRC, RDST, RWM, RWU, ROUT, RWS, RP = 4, 8, 12, 16, 20, 24, 28, 32, 36
sW, sG, sQ, sT0, sT1, sT2 = 40, 41, 43, 42 + 5, 44, 45
sT0 = 46
sROLE = 3
sEX = 48
sCAP, sRC = 50, 51
sNA, sNB, sTG, sTMAX, sI = 52, 53, 54, 55, 56
sM0 = 57
sOV = 58
sTAG = 61
sC = 62
sOVR = 64
sSP = 65
sEM = 66
sFR = 67
sM3 = 68
sB8 = 70
sPC = 72
sCE = 74
sFL = 75
sK1 = 76
sST = 80


def stamp(a, k, it=False):
    if ("itst" in Opt.exp) != it:
        return
    if Opt.stamps:
        a(f"{'s_memtime' if Opt.cycst else 's_memrealtime'} s[{sST+2*k}:{sST+2*k+1}]")


class Block:
    def __init__(self, a):
        self.a = a
        self.pend = []

    def __call__(self, t):
        if t.endswith(":"):
            self.a(t)
            return
        ins = Ins(t)
        use = ins.s | ins.d
        last = -1
        for i, dset in enumerate(self.pend):
            if dset & use:
                last = i
        if last >= 0:
            n = len(self.pend) - 1 - last
            self.a(f"s_waitcnt lgkmcnt({n})")
            self.pend = self.pend[last + 1:]
        if ins.is_ds:
            if len(self.pend) >= 15:
                self.a("s_waitcnt lgkmcnt(14)")
                self.pend = self.pend[-14:]
            self.pend.append(ins.d)
        self.a(t)

    def drain(self):
        if self.pend:
            self.a("s_waitcnt lgkmcnt(0)")
            self.pend = []


MF = "v_mfma_f32_32x32x16_bf16"
MF16 = "v_mfma_f32_16x16x32_bf16"
SC = "sc1"


def gen_main(a):
    V = Regs("v", 1, 256)
    vL = V.alloc("L")
    ID = V.alloc("ID", 8, 4)
    W3 = V.alloc("W3", 4)
    Q = V.alloc("Q", 8)
    G = V.alloc("G", 16)
    U = V.alloc("U", 12)
    NF = V.alloc("NF", 12)
    WF = V.alloc("WF", 32)
    T = [V.alloc("T0", 16), V.alloc("T1", 16)]
    X = V.alloc("X", 16)
    AF = V.alloc("AF", 20)
    SF = V.alloc("SF", 8)
    MS = V.alloc("MS", 8)
    vLI = V.alloc("LI", 4)
    EN = V.alloc("EN", 4, 4)
    TT = V.alloc("TT", 8)
    CK2 = V.alloc("CK2", 4)
    PA = NF
    XA = V.alloc("XA", 2)
    vSA = V.alloc("SA", 2)
    vST = V.alloc("ST", 2)
    vXC = V.alloc("XC", 2)
    vXV = V.alloc("XV", 2)
    vNO = V.alloc("NO", 2)
    REL = V.alloc("REL", 4)
    EB = V.alloc("EB", 2)
    CK = V.alloc("CK", 2)
    vNB = V.alloc("NB", 9)
    vAG = vNB + 3
    vOW = vNB + 6
    vEA, vLX, vLE, vEC, vEI, vWD, E3, vL16, vL4, vFL, vFV, vQA, vQB, vT16 = [V.alloc(n) for n in
        ("EA", "LX", "LE", "EC", "EI", "WD", "E3", "L16", "L4", "FL", "FV", "QA", "QB", "T16")]
    LC = V.alloc("LC", 8)
    ENT = [EN, EN + 1, EN + 2, E3]
    TMP = T[1]
    assert X == T[1] + 16
    t0, t1, t2, t3, t4, t5, t6, t7 = [TT + i for i in range(8)]
    vH, vM, vG16, vNH, vR4, vC4, vL15, vK3F = [LC + i for i in range(8)]

    a.raw(f".globl {NAME}_kernel\n.p2align 8\n.type {NAME}_kernel,@function")
    a.label(f"{NAME}_kernel")
    a(f"s_getpc_b64 s[{sPC}:{sPC+1}]")
    for (r_, off) in ((RX, 0), (RWM, 32), (RDST, 24), (RSRC, 16), (RWS, 64), (RWU, 40), (REA, 8), (ROUT, 48)):
        a(f"s_load_dwordx2 s[{r_}:{r_+1}], s[0:1], {off}")
    a("s_cmp_ge_u32 s2, 256")
    a("s_cbranch_scc1 L_end")
    a(f"v_lshlrev_b32 v{t0}, 7, v0")
    a(f"v_min_u32 v{t1}, L_code_end-{NAME}_kernel-8, v{t0}")
    a(f"global_load_dword v{vFV}, v{t1}, s[{sPC}:{sPC+1}]")
    stamp(a, 0)
    a(f"v_lshrrev_b32 v{t1}, 6, v0")
    a(f"v_and_b32 v{vL}, 63, v0")
    a(f"v_readfirstlane_b32 s{sW}, v{t1}")
    a(f"v_lshrrev_b32 v{vG16}, 4, v{vL}")
    a(f"v_and_b32 v{vL15}, 15, v{vL}")
    a(f"v_lshlrev_b32 v{vT16}, 4, v0")
    a(f"s_lshr_b32 s{sG}, s{sW}, 2")
    a(f"s_and_b32 s{sQ}, s{sW}, 3")
    a(f"v_lshlrev_b32 v{t1}, 2, v{vG16}")
    a(f"v_xor_b32 v{t1}, v{t1}, v{vL15}")
    a(f"v_lshlrev_b32 v{t1}, 4, v{t1}")
    a(f"v_lshl_add_u32 v{vWD}, v{vG16}, 8, v{t1}")
    a(f"s_lshl_b32 s{sT0}, s{sQ}, 3")
    a(f"v_add_u32 v{t1}, s{sT0}, v{vG16}")
    a(f"v_xor_b32 v{t2}, v{t1}, v{vL15}")
    a(f"v_and_b32 v{t2}, 15, v{t2}")
    a(f"v_lshlrev_b32 v{vXC}, 4, v{t2}")
    a(f"v_lshl_or_b32 v{vXV}, v{t1}, 8, v{vXC}")
    a(f"v_xor_b32 v{vXV+1}, {1024+64}, v{vXV}")
    a(f"s_lshl_b32 s{sT0}, s{sW}, 2")
    a(f"v_add_u32 v{t3}, s{sT0}, v{vG16}")
    a(f"v_xor_b32 v{t4}, v{t3}, v{vL15}")
    a(f"v_and_b32 v{t4}, 15, v{t4}")
    a(f"v_lshlrev_b32 v{t4}, 4, v{t4}")
    a(f"v_lshl_or_b32 v{vNO}, v{t3}, 17, v{t4}")
    a(f"v_add_u32 v{vNO+1}, {(64 - 39) << 16}, v{vNO}")
    a(f"s_cmp_ge_u32 s{sW}, 5")
    a(f"s_cselect_b32 s{sT0}, {39 << 16}, 0")
    a(f"v_subrev_u32 v{vNO}, s{sT0}, v{vNO}")

    a(f"s_lshl_b32 s{sB8}, s2, 8")
    a(f"v_lshlrev_b32 v{vL16}, 4, v{vL}")
    a(f"s_lshr_b32 s{sNB}, s2, 3")
    a(f"s_lshl_b32 s{sNB}, s{sNB}, 3")
    a(f"s_add_u32 s{sNB}, s{sNB}, s{sW}")
    a(f"s_lshl_b32 s{sNB}, s{sNB}, 10")
    en = [0]

    def early_loads():
        a(f"buffer_load_dwordx4 {vr(EN,4)}, v{vL16}, s[{RWM}:{RWM+3}], s{sNB} offen")
    a(f"s_lshl_b32 s{sM0}, s{sW}, 11")
    for r_, nb in ((RX, N * 256), (RWM, 272 * 256), (RDST, E * 4), (RSRC, E * 4), (RWU, 65536)):
        a(f"s_mov_b32 s{r_+2}, {nb}")
        a(f"s_mov_b32 s{r_+3}, 0x20000")
    a(f"s_cmp_lt_u32 s2, {G1}")
    a("s_cbranch_scc1 L_ld0")
    a(f"s_cmp_lt_u32 s2, {G1+NPW}")
    a("s_cbranch_scc0 L_ld2")
    a(f"s_sub_u32 s{sT1}, s2, {G1}")
    a(f"s_lshl_b32 s{sT1}, s{sT1}, 1")
    a(f"s_add_u32 s{sT1}, s{sT1}, s{sG}")
    a(f"s_lshl_b32 s{sSP}, s{sT1}, 13")
    a(f"s_add_u32 m0, s{sM0}, {XT}")
    a(f"s_lshl_b32 s{sT0}, s{sW}, 12")
    a(f"s_mov_b32 s{sROLE}, 1")
    a("s_waitcnt lgkmcnt(0)")
    a(f"buffer_load_dwordx4 v{vXV}, s[{RX}:{RX+3}], s{sSP} offen lds")
    a(f"s_add_u32 m0, s{sM0}, {XT+1024}")
    a(f"buffer_load_dwordx4 v{vXV+1}, s[{RX}:{RX+3}], s{sSP} offen lds")
    a(f"s_mov_b32 m0, s{sT0}")
    for k in range(4):
        a(f"buffer_load_dwordx4 v{vWD}, s[{RWM}:{RWM+3}], s{sT0} offen offset:{k*1024} lds")
    a("s_branch L_shadow")
    vD, vS = WF, WF + 4
    a.label("L_ld0")
    a(f"s_mul_i32 s{sI}, s2, {CH*4}")
    a(f"s_mov_b32 s{sROLE}, 0")
    a("s_waitcnt lgkmcnt(0)")
    a(f"buffer_load_dwordx4 {vr(vD,4)}, v{vT16}, s[{RDST}:{RDST+3}], s{sI} offen")
    a(f"buffer_load_dwordx4 {vr(vS,4)}, v{vT16}, s[{RSRC}:{RSRC+3}], s{sI} offen")
    a(f"s_load_dword s{sTAG}, s[{RWS}:{RWS+1}], 0")
    early_loads()
    PL, CN = 0, 24576
    FL = CN + 1024
    vK, vB = WF + 8, WF + 12
    vA, vT, vU, vOne = WF + 16, WF + 17, WF + 18, WF + 19
    vF = WF + 20
    for i in range(4):
        a(f"v_mov_b32 v{vF+i}, -1")
    a(f"v_mov_b32 v{vOne}, 0")
    a(f"v_lshlrev_b32 v{vA}, 2, v0")
    for k in range(3):
        a(f"ds_write_b128 v{vT16}, {vr(vF,4)} offset:{PL+k*8192}")
    a(f"ds_write_b32 v{vA}, v{vOne} offset:{CN}")
    a(f"s_mov_b32 s{RWS+2}, {WS_SIZE}")
    a(f"s_mov_b32 s{RWS+3}, 0x20000")
    a(f"v_mov_b32 v{vOne}, 1")
    a(f"v_cmp_gt_u32 vcc, {CH//4}, v0")
    a(f"v_lshlrev_b32 v{vU}, 22, v0")
    a(f"v_lshrrev_b32 v{PA}, 3, v0")
    a(f"v_mul_u32_u24 v{PA}, {G1*128}, v{PA}")
    a(f"v_and_b32 v{vK}, 7, v0")
    a(f"v_lshl_add_u32 v{PA}, v{vK}, 4, v{PA}")
    a(f"v_mov_b32 v{PA+1}, {FL}")
    a(f"s_lshl_b32 s{sT0}, s2, 7")
    a(f"s_add_u32 s{sT0}, s{sT0}, {WS_CELLS if 'nocell' not in Opt.exp else 0x70000000}")
    a("s_waitcnt lgkmcnt(0)")
    a(f"s_add_u32 s{sTAG}, s{sTAG}, 1")
    a("s_barrier")
    a("s_mov_b64 exec, vcc")
    a("s_waitcnt vmcnt(2)")
    stamp(a, 10)
    for j in range(4):
        a(f"v_and_b32 v{vB+j}, 255, v{vD+j}")
        a(f"v_lshlrev_b32 v{PA+2+j}, 2, v{vB+j}")
    for j in range(4):
        a(f"ds_add_rtn_u32 v{vK+j}, v{PA+2+j}, v{vOne} offset:{CN}")
    a("s_waitcnt vmcnt(1)")
    for j in range(4):
        a(f"v_lshrrev_b32 v{vD+j}, 8, v{vD+j}")
        a(f"v_lshl_or_b32 v{vD+j}, v{vS+j}, 6, v{vD+j}")
        a(f"v_or_b32 v{vD+j}, v{vD+j}, v{vU}")
        if j < 3:
            a(f"v_add_u32 v{vU}, {1 << 20}, v{vU}")
        a(f"v_lshlrev_b32 v{vB+j}, 5, v{vB+j}")
    for j in range(4):
        a(f"s_waitcnt lgkmcnt({3-j})")
        a(f"v_min_u32 v{vS+j}, {CAPK-1}, v{vK+j}")
        a(f"v_lshrrev_b32 v{vT}, 3, v{vS+j}")
        a(f"v_lshl_add_u32 v{vB+j}, v{vT}, 13, v{vB+j}")
        a(f"v_and_b32 v{vT}, 7, v{vS+j}")
        a(f"v_lshl_add_u32 v{vB+j}, v{vT}, 2, v{vB+j}")
    a(f"v_max3_u32 v{vU}, v{vK}, v{vK+1}, v{vK+2}")
    a(f"v_max_u32 v{vU}, v{vU}, v{vK+3}")
    a(f"v_cmp_le_u32 vcc, {CAPK}, v{vU}")
    for j in range(4):
        a(f"ds_write_b32 v{vB+j}, v{vD+j} offset:{PL}")
    a("s_mov_b64 exec, vcc")
    a(f"ds_write_b32 v{PA+1}, v{vOne}")
    a("s_mov_b64 exec, -1")
    vO = [WF, WF + 4, WF + 20, WF + 24]
    a("s_waitcnt lgkmcnt(0)")
    a("s_barrier")
    a.label("L_bin_out")
    a(f"ds_read_b32 v{vU}, v{PA+1}")
    for k in range(4):
        a(f"ds_read2st64_b32 {vr(vO[k],2)}, v{vA} offset0:{k*8} offset1:{k*8+32}")
        a(f"ds_read_b32 v{vO[k]+2}, v{vA} offset:{k*2048+16384}")
    for k in range(4):
        a(f"v_mov_b32 v{vO[k]+3}, s{sTAG}")
    a("s_waitcnt lgkmcnt(8)")
    a(f"v_readfirstlane_b32 s{sT1}, v{vU}")
    a(f"s_cmp_lg_u32 s{sT1}, 0")
    a("s_cbranch_scc1 L_bin_ovf")
    for k in range(4):
        a(f"s_waitcnt lgkmcnt({6-2*k})")
        a(f"buffer_store_dwordx4 {vr(vO[k],4)}, v{PA}, s[{RWS}:{RWS+3}], s{sT0} offen {SC}")
        if k < 3:
            a(f"s_add_u32 s{sT0}, s{sT0}, {64*G1*128}")
    stamp(a, 7)
    a("s_branch L_shadow0")


    a.label("L_ld2")
    a(f"s_sub_u32 s{sSP}, s2, {G1+NPW}")
    a(f"s_lshl_b32 s{sT0}, s{sW}, 10")
    a(f"s_lshl_b32 s{sT1}, s{sSP}, 13")
    a(f"s_add_u32 s{sT1}, s{sT1}, s{sT0}")
    a(f"s_mov_b32 m0, s{sT0}")
    a(f"s_mov_b32 s{sROLE}, 2")
    a("s_waitcnt lgkmcnt(0)")
    a(f"buffer_load_dwordx4 v{vWD}, s[{RWU}:{RWU+3}], s{sT1} offen lds")

    a.label("L_shadow")
    a(f"s_load_dword s{sTAG}, s[{RWS}:{RWS+1}], 0")
    a.label("L_shadow0")

    def lds_init(with_misc):
        z = X
        for i in range(4):
            a(f"v_mov_b32 v{z+i}, 0")
        a(f"v_add_u32 v{z+8}, {ST}, v{vT16}")
        a(f"v_cmp_ne_u32 vcc, 511, v0")
        a(f"v_mov_b32 v{z+4}, 0x7fffff")
        for k in range(6):
            a(f"ds_write_b128 v{z+8}, {vr(z,4)} offset:{k*8192}")
        a(f"s_cmp_eq_u32 s{sG}, 0")
        a(f"s_cbranch_scc0 L_li{lds_init.n}")
        a(f"ds_write_b128 v{z+8}, {vr(z,4)} offset:{6*8192}")
        a.label(f"L_li{lds_init.n}")
        lds_init.n += 1
        if with_misc:
            a(f"v_cndmask_b32 v{z+4}, 0, v{z+4}, vcc")
        for i in range(1, 4):
            a(f"v_mov_b32 v{z+4+i}, v{z+4}")
        if with_misc:
            a(f"ds_write_b128 v{z+8}, {vr(z+4,4)} offset:{LB-ST}")
        else:
            a(f"s_and_saveexec_b64 s[{sEX}:{sEX+1}], vcc")
            a(f"ds_write_b128 v{z+8}, {vr(z+4,4)} offset:{LB-ST}")
            a(f"s_mov_b64 exec, s[{sEX}:{sEX+1}]")
    lds_init.n = 0
    lds_init(True)

    for r_, nb in ((RWS, WS_SIZE), (REA, E * 32), (ROUT, N * 256), (RP, N * 256)):
        a(f"s_mov_b32 s{r_+2}, {nb}")
        a(f"s_mov_b32 s{r_+3}, 0x20000")
    a(f"s_add_u32 s{RP}, s{RWS}, {WS_P}")
    a(f"s_addc_u32 s{RP+1}, s{RWS+1}, 0")
    a(f"s_mov_b32 s{sC}, {f32(-LOG2E)}")
    a(f"s_mov_b32 s{sC+1}, {f32(-LOG2E)}")
    a(f"v_lshrrev_b32 v{vH}, 5, v{vL}")
    a(f"v_and_b32 v{vM}, 31, v{vL}")
    a(f"v_and_b32 v{vNH}, 1, v{vG16}")
    a(f"v_bfe_u32 v{vR4}, v{vL}, 2, 2")
    a(f"v_and_b32 v{vC4}, 3, v{vL}")
    a(f"v_lshlrev_b32 v{vL4}, 2, v{vL}")
    a(f"v_xor_b32 v{vXC+1}, 64, v{vXC}")
    cn = [0]

    def common_loads():
        n = cn[0]
        cn[0] += 1
        s0 = sNA
        g = []
        pre = [f"s_lshl_b32 s{s0}, s{sW}, 12", f"s_add_u32 s{s0}, s{s0}, 32768", f"s_mov_b32 m0, s{s0}", "s_nop 0"]
        for k in range(4):
            g.append((pre if k == 0 else []) + [f"buffer_load_dwordx4 v{vWD}, s[{RWM}:{RWM+3}], s{s0} offen offset:{k*1024} lds"])
        g.insert(0, [
            f"s_lshl_b32 s{s0}, s{sW}, 10",
            f"s_add_u32 m0, s{s0}, {NT}",
            "s_nop 0",
            f"buffer_load_dwordx4 v{vNO}, s[{RX}:{RX+3}], s{sB8} offen lds"])
        g.append([
            f"s_lshl_b32 s{s0}, s{sW}, 10",
            f"s_cmp_lt_u32 s{sW}, 2",
            f"s_cbranch_scc0 L_ld_w3_{n}",
            f"s_add_u32 m0, s{s0}, {NT+8192}",
            "s_nop 0",
            f"buffer_load_dwordx4 v{vNO+1}, s[{RX}:{RX+3}], s{sB8} offen lds",
            f"s_branch L_ld_done_{n}",
            f"L_ld_w3_{n}:",
            f"s_min_u32 s{s0}, s{s0}, {5*1024}",
            f"s_add_u32 m0, s{s0}, {W3L-2048}",
            f"s_add_u32 s{s0}, s{s0}, {65536-2048}",
            f"buffer_load_dwordx4 v{vWD}, s[{RWM}:{RWM+3}], s{s0} offen lds",
            f"L_ld_done_{n}:"])
        return g

    a(f"v_lshrrev_b32 v{t0}, 1, v{vC4}")
    a(f"v_lshl_add_u32 v{t5}, v{vNH}, 1, v{t0}")
    a(f"s_lshl_b32 s{sT0}, s{sQ}, 2")
    a(f"v_add_u32 v{t0}, s{sT0}, v{t5}")
    a(f"v_lshlrev_b32 v{t6}, 2, v{vR4}")
    a(f"v_xor_b32 v{t0}, v{t0}, v{t6}")
    a(f"v_lshlrev_b32 v{t0}, 4, v{t0}")
    a(f"v_and_b32 v{t7}, 1, v{vC4}")
    a(f"v_lshl_add_u32 v{t0}, v{t7}, 3, v{t0}")
    a(f"v_lshl_add_u32 v{t4}, v{vH}, 3, v{vR4}")
    a(f"v_lshl_add_u32 v{vQB}, v{t4}, 8, v{t0}")
    a(f"v_lshl_add_u32 v{t0}, v{t7}, 1, v{vNH}")
    a(f"v_add_u32 v{t0}, s{sT0}, v{t0}")
    a(f"v_xor_b32 v{t0}, v{t0}, v{t6}")
    a(f"v_lshlrev_b32 v{t0}, 4, v{t0}")
    a(f"v_lshrrev_b32 v{t1}, 1, v{vC4}")
    a(f"v_lshl_add_u32 v{t0}, v{t1}, 3, v{t0}")
    a(f"v_lshl_add_u32 v{PA}, v{t4}, 8, v{t0}")
    a(f"v_and_b32 v{t0}, 15, v{vM}")
    a(f"v_xor_b32 v{t1}, v{t0}, v{vH}")
    a(f"v_lshlrev_b32 v{t1}, 4, v{t1}")
    a(f"v_lshl_add_u32 v{t1}, v{vM}, 8, v{t1}")
    a(f"s_lshl_b32 s{sT1}, s{sG}, 13")
    a(f"s_add_u32 s{sT2}, s{sT1}, {XT}")
    a(f"v_add_u32 v{AF}, s{sT2}, v{t1}")
    for s in range(1, 8):
        a(f"v_xor_b32 v{AF+s}, {s*32}, v{AF}")
    a(f"v_lshl_add_u32 v{t1}, v{vH}, 1, s{sT0}")
    a(f"v_xor_b32 v{t1}, v{t1}, v{t0}")
    a(f"v_lshlrev_b32 v{t1}, 4, v{t1}")
    a(f"v_lshl_add_u32 v{t1}, v{vM}, 8, v{t1}")
    a(f"v_add_u32 v{PA+1}, s{sT1}, v{t1}")
    a(f"v_xor_b32 v{PA+2}, 16, v{PA+1}")
    a(f"v_add_u32 v{PA+3}, s{sM0}, v{vL16}")
    a(f"v_and_b32 v{t0}, 0x13, v{vM}")
    a(f"v_and_b32 v{t1}, 4, v{vM}")
    a(f"v_lshl_or_b32 v{t0}, v{t1}, 1, v{t0}")
    a(f"v_and_b32 v{t1}, 8, v{vM}")
    a(f"v_lshrrev_b32 v{t1}, 1, v{t1}")
    a(f"v_or_b32 v{t0}, v{t0}, v{t1}")
    a(f"v_min_u32 v{t0}, 19, v{t0}")
    a(f"s_mul_i32 s{sT1}, s{sG}, 20")
    a(f"v_add_u32 v{t0}, s{sT1}, v{t0}")
    a(f"v_xor_b32 v{t1}, v{t0}, v{vH}")
    a(f"v_and_b32 v{t1}, 15, v{t1}")
    a(f"v_lshlrev_b32 v{t1}, 4, v{t1}")
    a(f"v_lshl_add_u32 v{t1}, v{t0}, 8, v{t1}")
    a(f"v_add_u32 v{AF+8}, {NT}, v{t1}")
    for s in range(1, 8):
        a(f"v_xor_b32 v{AF+8+s}, {s*32}, v{AF+8}")
    a(f"v_and_b32 v{t0}, 24, v{vM}")
    a(f"v_and_b32 v{t1}, 1, v{vM}")
    a(f"v_lshl_or_b32 v{t0}, v{t1}, 2, v{t0}")
    a(f"v_bfe_u32 v{t1}, v{vM}, 1, 2")
    a(f"v_or_b32 v{t0}, v{t0}, v{t1}")
    a(f"v_add_u32 v{t1}, s{sT0}, v{vH}")
    a(f"v_xor_b32 v{t1}, v{t1}, v{t0}")
    a(f"v_and_b32 v{t1}, 15, v{t1}")
    a(f"v_lshlrev_b32 v{t1}, 4, v{t1}")
    a(f"v_lshl_add_u32 v{t1}, v{t0}, 8, v{t1}")
    a(f"s_lshl_b32 s{sT1}, s{sG}, 15")
    a(f"v_add_u32 v{XA}, s{sT1}, v{t1}")
    a(f"v_xor_b32 v{XA+1}, 32, v{XA}")
    a(f"s_mul_i32 s{sEM}, s{sG}, {R*1024}")
    a(f"s_add_u32 s{sEM}, s{sEM}, {EA}")
    a(f"v_bfe_u32 v{t0}, v{vM}, 3, 1")
    a(f"v_xor_b32 v{t0}, v{t0}, v{vH}")
    a(f"v_lshlrev_b32 v{t0}, 4, v{t0}")
    a(f"v_lshl_add_u32 v{t0}, v{vM}, 5, v{t0}")
    a(f"v_add_u32 v{vEA}, s{sEM}, v{t0}")
    a(f"s_lshl_b32 s{sT1}, s{sQ}, 10")
    a(f"s_add_u32 s{sEM}, s{sEM}, s{sT1}")
    a(f"s_mul_i32 s{sT1}, s{sG}, {R*2048}")
    a(f"s_add_u32 s{sT1}, s{sT1}, {ST}")
    a(f"v_bfe_u32 v{t0}, v{vM}, 2, 2")
    a(f"v_xor_b32 v{t0}, v{t0}, v{vH}")
    a(f"v_lshlrev_b32 v{t0}, 4, v{t0}")
    a(f"v_lshl_add_u32 v{t0}, v{vM}, 6, v{t0}")
    a(f"v_add_u32 v{vSA}, s{sT1}, v{t0}")
    a(f"v_xor_b32 v{vSA+1}, 32, v{vSA}")
    a(f"v_xor_b32 v{t0}, v{t5}, v{vH}")
    a(f"v_lshlrev_b32 v{t0}, 4, v{t0}")
    a(f"v_lshl_add_u32 v{t0}, v{t7}, 3, v{t0}")
    a(f"v_lshl_add_u32 v{t1}, v{vH}, 2, v{vR4}")
    a(f"v_lshl_add_u32 v{t0}, v{t1}, 6, v{t0}")
    a(f"v_add_u32 v{vST}, s{sT1}, v{t0}")
    a(f"v_xor_b32 v{vST+1}, 32, v{vST}")
    a(f"v_add_u32 v{vST+1}, 512, v{vST+1}")
    a(f"s_lshl_b32 s{sT1}, s{sG}, 12")
    a(f"s_add_u32 s{sT1}, s{sT1}, {LB}")
    a(f"s_lshl_b32 s{sT2}, s{sQ}, 6")
    a(f"s_add_u32 s{sT2}, s{sT2}, s{sT1}")
    a(f"v_lshl_add_u32 v{vLX}, v{vG16}, 4, s{sT2}")
    a(f"v_lshrrev_b32 v{t0}, 1, v{vL}")
    a(f"s_lshl_b32 s{sT2}, s{sQ}, 8")
    a(f"s_add_u32 s{sT2}, s{sT2}, s{sT1}")
    a(f"v_lshl_add_u32 v{vLE}, v{t0}, 3, s{sT2}")
    a(f"v_xor_b32 v{vEC}, v{vL}, v{vG16}")
    a(f"v_and_b32 v{vEC}, 1, v{vEC}")
    a(f"v_lshlrev_b32 v{vEC}, 4, v{vEC}")
    a(f"s_mul_i32 s{sCE}, s2, {G1}")
    a(f"s_mul_i32 s{sT1}, s{sW}, 10")
    a(f"s_add_u32 s{sCE}, s{sCE}, s{sT1}")
    a(f"s_lshl_b32 s{sCE}, s{sCE}, 7")
    a(f"s_add_u32 s{sCE}, s{sCE}, {WS_CELLS}")
    a(f"v_lshrrev_b32 v{CK}, 3, v{vL}")
    a(f"v_add_u32 v{CK}, s{sT1}, v{CK}")
    a(f"s_add_u32 s{sT1}, s{sT1}, 8")
    a(f"v_add_u32 v{CK+1}, s{sT1}, v{vH}")
    a(f"v_mul_u32_u24 v{EB}, {CH}, v{CK}")
    a(f"v_mul_u32_u24 v{EB+1}, {CH}, v{CK+1}")
    a(f"s_mul_i32 s{sFL}, s{sW}, {22 << FSH}")
    a(f"s_add_u32 s{sFL}, s{sFL}, {WS_FLAGS}")
    a(f"v_min_u32 v{vFL}, 21, v{vL}")
    a(f"v_lshlrev_b32 v{vFL}, {FSH}, v{vFL}")
    a(f"v_cmp_eq_u32 s[{sM3}:{sM3+1}], 3, v{vC4}")
    a(f"s_mov_b32 s{sCAP}, {R*32}")
    a(f"s_mov_b32 s{sOVR}, 0")
    a(f"v_mov_b32 v{vK3F}, 0x3f80")

    def late_consts():
        a(f"v_lshrrev_b32 v{t0}, 1, v{vM}")
        a(f"v_lshlrev_b32 v{t1}, 2, v{vH}")
        a(f"v_sub_u32 v{t0}, v{t0}, v{t1}")
        a(f"v_lshlrev_b32 v{t1}, 4, v{vM}")
        a(f"v_lshlrev_b32 v{t1}, v{t1}, v{vK3F}")
        for s in range(2):
            for r_ in range(4):
                a(f"v_cmp_eq_u32 vcc, {8*s+r_}, v{t0}")
                a(f"v_mov_b32 v{G+8*s+2*r_}, 0")
                a(f"v_mov_b32 v{G+8*s+2*r_+1}, 0")
                a(f"v_cndmask_b32 v{ID+4*s+r_}, 0, v{t1}, vcc")
        a(f"s_lshl_b32 s{sM0}, s{sG}, 15")
        a(f"s_lshl_b32 s{sT0}, s{sQ}, 11")
        a(f"s_add_u32 s{sM0}, s{sM0}, s{sT0}")
        a(f"s_lshl_b32 s{sFR}, s{sW}, 13")
        a(f"s_add_u32 s{sFR}, s{sFR}, {WS_FR}")
        a(f"s_lshl_b32 s{sT0}, s{sW}, 1")
        a(f"v_lshrrev_b32 v{t2}, 1, v{vG16}")
        a(f"v_add_u32 v{t2}, s{sT0}, v{t2}")
        for nt in range(3):
            if nt == 0:
                a(f"v_mov_b32 v{t0}, v{vL15}")
            else:
                a(f"v_add_u32 v{t0}, {16*nt}, v{vL15}")
            if nt == 2:
                a(f"v_min_u32 v{t0}, 39, v{t0}")
            a(f"v_xor_b32 v{t1}, v{t0}, v{vG16}")
            a(f"v_and_b32 v{t1}, 15, v{t1}")
            a(f"v_lshlrev_b32 v{t1}, 4, v{t1}")
            a(f"v_lshl_add_u32 v{t1}, v{t0}, 8, v{t1}")
            a(f"v_add_u32 v{vNB+nt}, {NT}, v{t1}")
            a(f"v_xor_b32 v{t1}, v{t0}, v{t2}")
            a(f"v_and_b32 v{t1}, 15, v{t1}")
            a(f"v_lshlrev_b32 v{t1}, 4, v{t1}")
            a(f"v_lshl_add_u32 v{t1}, v{vNH}, 3, v{t1}")
            a(f"v_lshl_add_u32 v{t1}, v{t0}, 8, v{t1}")
            a(f"v_add_u32 v{vOW+nt}, {NT}, v{t1}")
            a(f"v_cmp_le_u32 vcc, 20, v{t0}")
            a(f"v_lshlrev_b32 v{t1}, 4, v{t0}")
            a(f"v_lshl_add_u32 v{t1}, v{vG16}, 9, v{t1}")
            a(f"v_add_u32 v{t3}, {ST + R*2048 - 320}, v{t1}")
            a(f"v_add_u32 v{t1}, {ST}, v{t1}")
            a(f"v_cndmask_b32 v{vAG+nt}, v{t1}, v{t3}, vcc")

    if "nonode" in Opt.exp:
        a(f"s_mov_b32 s{sB8}, 0x7ff00000")
    for grp in common_loads():
        for t in grp:
            a(t)
    a(f"s_cmp_eq_u32 s{sROLE}, 1")
    a("s_cbranch_scc0 L_role02")
    a("s_waitcnt vmcnt(6) lgkmcnt(0)")
    a(f"s_add_u32 s{sTAG}, s{sTAG}, 1")
    a("s_barrier")
    stamp(a, 10)
    b = Block(a)

    def p_rd(s):
        b(f"ds_read_b128 {vr(TMP+4*s,4)}, v{AF+s}")
        for jj in range(2):
            b(f"ds_read_b64_tr_b16 {vr(WF+4*s+2*jj,2)}, v{PA} offset:{s*4096+jj*1024}")
    for s in range(4):
        p_rd(s)
    for z in range(8):
        b(f"{MF} {vr(T[0],16)}, {vr(WF+4*z,4)}, {vr(TMP+4*z,4)}, {'0' if z == 0 else vr(T[0],16)}")
        if z < 4:
            p_rd(z + 4)
    a("s_barrier")
    for i in range(8):
        a(f"v_mul_f32 v{T[0]+2*i}, s{sC}, v{T[0]+2*i}")
        a(f"v_mul_f32 v{T[0]+2*i+1}, s{sC}, v{T[0]+2*i+1}")
        a(f"v_cvt_pk_bf16_f32 v{MS+i}, v{T[0]+2*i}, v{T[0]+2*i+1}")
    a(f"ds_write_b128 v{PA+1}, {vr(MS,4)} offset:{SCR}")
    a(f"ds_write_b128 v{PA+2}, {vr(MS+4,4)} offset:{SCR}")
    a("s_waitcnt vmcnt(0) lgkmcnt(0)")
    a("s_barrier")
    a(f"ds_read_b128 {vr(MS,4)}, v{PA+3} offset:{SCR}")
    a(f"ds_read_b128 {vr(MS+4,4)}, v{PA+3} offset:{SCR+1024}")
    a("s_waitcnt lgkmcnt(1)")
    a(f"buffer_store_dwordx4 {vr(MS,4)}, v{vXV}, s[{RP}:{RP+3}], s{sSP} offen {SC}")
    a("s_waitcnt lgkmcnt(0)")
    a(f"buffer_store_dwordx4 {vr(MS+4,4)}, v{vXV+1}, s[{RP}:{RP+3}], s{sSP} offen {SC}")
    stamp(a, 7)

    def poll_cells():
        a(f"buffer_load_dwordx4 {vr(EN,4)}, v{vL16}, s[{RWS}:{RWS+3}], s{sCE} offen {SC}")
        a(f"buffer_load_dword v{E3}, v{vL4}, s[{RWS}:{RWS+3}], s{sCE} offen offset:1024 {SC}")
    a.label("L_b1")
    if "nopoll" in Opt.exp:
        a(f"s_mov_b32 s{sCE}, 0x7ffff000")
    poll_cells()
    a(f"v_add_u32 v{t3}, {W3L}, v{vQB}")
    b = Block(a)

    def q_rd(s):
        b(f"ds_read_b128 {vr(TMP+4*s,4)}, v{AF+8+s}")
        for jj in range(2):
            b(f"ds_read_b64_tr_b16 {vr(WF+4*s+2*jj,2)}, v{vQB} offset:{32768+s*4096+jj*1024}")
    for s in range(4):
        q_rd(s)
    for z in range(8):
        b(f"{MF} {vr(T[0],16)}, {vr(TMP+4*z,4)}, {vr(WF+4*z,4)}, {'0' if z == 0 else vr(T[0],16)}")
        if z < 4:
            q_rd(z + 4)
        if z == 4:
            for jj in range(2):
                b(f"ds_read_b64_tr_b16 {vr(W3+2*jj,2)}, v{t3} offset:{jj*1024}")
    a.c("---- publish flag (roles 1, 2): every wave's stores are drained before the barrier")
    a(f"s_cmp_eq_u32 s{sROLE}, 0")
    a("s_cbranch_scc1 L_noflag")
    a("s_waitcnt vmcnt(2)")
    a("s_barrier")
    stamp(a, 1)
    a(f"s_cmp_eq_u32 s{sW}, 7")
    a("s_cbranch_scc0 L_noflag")
    a(f"s_sub_u32 s{sT0}, s2, {G1}")
    a(f"s_lshl_b32 s{sT0}, s{sT0}, {FSH}")
    a(f"s_add_u32 s{sT0}, s{sT0}, {WS_FLAGS}")
    a(f"v_mov_b32 v{t1}, s{sTAG}")
    a("s_mov_b64 exec, 1")
    a(f"buffer_store_dword v{t1}, v{vL}, s[{RWS}:{RWS+3}], s{sT0} offen {SC}")
    a("s_mov_b64 exec, -1")
    a("s_waitcnt vmcnt(1)")
    a("s_branch L_poll1")
    a.label("L_noflag")
    a("s_waitcnt vmcnt(0)")
    a.label("L_poll1")
    stamp(a, 2)
    if "trunc" in Opt.exp:
        for k in (3, 9, 8, 4, 5):
            stamp(a, k)
        a("s_branch L_dump")
    a(f"s_mov_b32 s{sSP}, {SPIN}")
    a.label("L_poll")
    a(f"v_cmp_ne_u32 vcc, s{sTAG}, v{E3}")
    a(f"v_cmp_ne_u32 s[{sT1}:{sT1+1}], s{sTAG}, v{EN+3}")
    a(f"s_and_b64 vcc, vcc, s[{sM3}:{sM3+1}]")
    a(f"s_or_b64 s[{sEX}:{sEX+1}], vcc, s[{sT1}:{sT1+1}]")
    a("s_cbranch_scc1 L_repoll")
    stamp(a, 3)
    a(f"v_cndmask_b32 v{E3}, v{E3}, -1, s[{sM3}:{sM3+1}]")
    a(f"v_cmp_eq_u32 vcc, {OVF_MARK}, v{EN}")
    a(f"v_cmp_eq_u32 s[{sT1}:{sT1+1}], {OVF_MARK}, v{E3}")
    a(f"s_or_b64 s[{sEX}:{sEX+1}], vcc, s[{sT1}:{sT1+1}]")
    a("s_cbranch_scc1 L_markov")

    a.label("L_count")
    sh = [SF + i for i in range(4)]
    run = [AF + i for i in range(5)]
    inc = [SF + 4 + i for i in range(4)]
    for j in range(4):
        a(f"v_lshlrev_b32 v{sh[j]}, 4, v{ENT[j]}")
        a(f"v_not_b32 v{inc[j]}, v{ENT[j]}")
        a(f"v_lshrrev_b32 v{inc[j]}, 31, v{inc[j]}")
        a(f"v_lshlrev_b32 v{inc[j]}, v{sh[j]}, v{inc[j]}")
    a(f"v_add_u32 v{run[2]}, v{inc[0]}, v{inc[1]}")
    a(f"v_add_u32 v{run[3]}, v{run[2]}, v{inc[2]}")
    a(f"v_add_u32 v{run[4]}, v{run[3]}, v{inc[3]}")
    a(f"v_mov_b32 v{t2}, {CNT}")
    a(f"s_mov_b32 s{sRC}, 0")
    a(f"v_add_u32_dpp v{t1}, v{run[4]}, v{run[4]} row_shr:1 row_mask:0xf bank_mask:0xf bound_ctrl:0")
    for j, k in enumerate((2, 4, 8)):
        a(f"v_ashrrev_i32 v{REL+j}, 31, v{ENT[j]}")
        a(f"v_add_u32_dpp v{t1}, v{t1}, v{t1} row_shr:{k} row_mask:0xf bank_mask:0xf bound_ctrl:0")
    a(f"v_ashrrev_i32 v{REL+3}, 31, v{ENT[3]}")
    a(f"v_add_u32_dpp v{t1}, v{t1}, v{t1} row_bcast:15 row_mask:0xa bank_mask:0xf")
    a(f"v_add_u32_dpp v{t1}, v{t1}, v{t1} row_bcast:31 row_mask:0xc bank_mask:0xf")
    a("s_mov_b32 exec_lo, 0")
    a("s_brev_b32 exec_hi, 1")
    a(f"ds_add_rtn_u32 v{t3}, v{t2}, v{t1}")
    a("s_mov_b64 exec, -1")
    a(f"v_sub_u32 v{run[0]}, v{t1}, v{run[4]}")
    a(f"v_add_u32 v{run[1]}, v{run[0]}, v{inc[0]}")
    a(f"v_add_u32 v{run[2]}, v{run[0]}, v{run[2]}")
    a(f"v_add_u32 v{run[3]}, v{run[0]}, v{run[3]}")
    a("s_waitcnt lgkmcnt(0)")
    a(f"v_readlane_b32 s{sT0}, v{t3}, 63")
    for j in range(4):
        a(f"v_add_u32 v{run[j]}, s{sT0}, v{run[j]}")
    for j in range(4):
        a(f"v_bfe_u32 v{run[j]}, v{run[j]}, v{sh[j]}, 16")
        a(f"v_or_b32 v{REL+j}, v{REL+j}, v{run[j]}")

    def poll_flags():
        a(f"buffer_load_dword v{vFV}, v{vFL}, s[{RWS}:{RWS+3}], s{sFL} offen {SC}")
    a.label("L_round")
    poll_flags()
    a(f"v_mov_b32 v{t6}, {ST}")
    a(f"v_mov_b32 v{t5}, {LB}")
    for j in (0, 1, 3, 2):
        a(f"v_cmp_gt_u32 vcc, s{sCAP}, v{REL+j}")
        a(f"s_and_b64 exec, vcc, vcc")
        a(f"s_cbranch_scc0 L_wskip{j}")
        a(f"v_bfe_u32 v{t0}, v{ENT[j]}, 6, 14")
        a(f"v_lshrrev_b32 v{t1}, 20, v{ENT[j]}")
        a(f"v_add_u32 v{t1}, v{t1}, v{EB + (1 if j == 3 else 0)}")
        a(f"v_and_b32 v{t2}, 1, v{ENT[j]}")
        a(f"v_lshl_add_u32 v{t3}, v{t2}, 9, v{REL+j}")
        a(f"v_lshl_add_u32 v{t3}, v{t3}, 3, v{t5}")
        a(f"v_mad_u32_u24 v{t2}, v{t2}, s{sCAP}, v{REL+j}")
        a(f"v_and_or_b32 v{t7}, v{ENT[j]}, 62, v{t6}")
        a(f"v_lshlrev_b32 v{t4}, 2, v{REL+j}")
        a(f"v_and_b32 v{t4}, 0x30, v{t4}")
        a(f"v_xor_b32 v{t7}, v{t7}, v{t4}")
        a(f"v_lshl_add_u32 v{t7}, v{t2}, 6, v{t7}")
        a(f"ds_write_b64 v{t3}, {vr(t0,2)}")
        a(f"ds_write_b16 v{t7}, v{vK3F}")
        a.label(f"L_wskip{j}")
        a("s_mov_b64 exec, -1")
    a(f"v_mov_b32 v{t4}, {CNT}")
    a("s_waitcnt lgkmcnt(0)")
    a("s_barrier")
    stamp(a, 9)
    LXV = TMP
    a(f"ds_read_b32 v{t0}, v{vLE} offset:4")
    for k in range(5):
        a(f"ds_read_b128 {vr(LXV+4*k,4)}, v{vLX} offset:{k*256}")
    a(f"ds_read_b128 {vr(vLI,4)}, v{vLX} offset:{5*256}")
    a(f"ds_read_b32 v{vEI}, v{vLE} offset:{4+1024}")
    a(f"ds_read_b128 {vr(MS,4)}, v{t4}")
    a(f"s_lshl_b32 s{sM0}, s{sG}, 15")
    a(f"s_lshl_b32 s{sT0}, s{sQ}, 11")
    a(f"s_add_u32 s{sM0}, s{sM0}, s{sT0}")
    a(f"s_mov_b32 s{sSP}, {SPIN}")
    a(f"s_mov_b32 m0, s{sEM}")
    a("s_waitcnt lgkmcnt(8)")
    a(f"v_lshl_or_b32 v{t0}, v{t0}, 5, v{vEC}")
    a(f"s_cmp_lt_u32 s{sQ}, 2")
    a("s_cbranch_scc0 L_e0late")
    a(f"buffer_load_dwordx4 v{t0}, s[{REA}:{REA+3}], 0 offen lds")
    a("s_waitcnt vmcnt(1)")
    a("s_branch L_pollf")
    a.label("L_e0late")
    a("s_waitcnt vmcnt(0)")
    a.label("L_pollf")
    a(f"v_cmp_ne_u32 vcc, s{sTAG}, v{vFV}")
    a("s_cbranch_vccnz L_repollf")
    a("s_waitcnt lgkmcnt(3)")
    for k in range(5):
        for q in range(2):
            a(f"v_lshl_or_b32 v{LXV+4*k+2*q}, v{LXV+4*k+2*q}, 8, v{vXC+q}")
    a(f"s_mov_b32 m0, s{sM0}")
    a("s_barrier")
    stamp(a, 8)

    def x_dma0(k):
        for q in range(2):
            if k or q:
                a(f"s_add_u32 m0, s{sM0}, {(k&3)*8192+q*1024}")
            a(f"buffer_load_dwordx4 v{LXV+4*k+2*q}, s[{RP}:{RP+3}], 0 offen sc1 lds")
    x_dma0(0)
    x_dma0(1)
    a(f"v_mov_b32 v{CK2+2}, v{t0}")
    for j in range(4):
        a(f"v_subrev_u32 v{REL+j}, s{sCAP}, v{REL+j}")
    a("s_waitcnt lgkmcnt(0)")
    a(f"v_lshl_or_b32 v{vEI}, v{vEI}, 5, v{vEC}")
    a(f"s_cmp_lg_u32 s{sRC}, 0")
    a("s_cbranch_scc1 L_havetot")
    a(f"v_readfirstlane_b32 s{sNA}, v{MS}")
    a(f"s_mov_b32 s{sRC}, 1")
    a(f"s_lshr_b32 s{sNB}, s{sNA}, 16")
    a(f"s_and_b32 s{sNA}, s{sNA}, 0xffff")
    a(f"s_cmp_lg_u32 s{sOVR}, 0")
    a("s_cbranch_scc1 L_havetot")
    for k in range(3):
        a(f"v_readfirstlane_b32 s{sOV+k}, v{MS+1+k}")
    a(f"s_mov_b32 s{sOVR}, 1")
    b.pend = []
    for i in range(4):
        w = W3 + i
        b(f"v_lshlrev_b32 v{t0}, 16, v{w}")
        b(f"v_and_b32 v{t1}, 0xffff0000, v{w}")
        b(f"v_mul_f32 v{t0}, s{sC}, v{t0}")
        b(f"v_mul_f32 v{t1}, s{sC}, v{t1}")
        b(f"v_cvt_pk_bf16_f32 v{w}, v{t0}, v{t1}")
    for i in range(8):
        a(f"v_pk_mul_f32 {vr(T[0]+2*i,2)}, {vr(T[0]+2*i,2)}, s[{sC}:{sC+1}]")
        a(f"v_cvt_pk_bf16_f32 v{Q+i}, v{T[0]+2*i}, v{T[0]+2*i+1}")
    late_consts()
    a.label("L_havetot")
    a(f"s_max_i32 s{sT1}, s{sNA}, s{sNB}")
    a(f"s_cmp_eq_u32 s{sG}, 0")
    a(f"s_cselect_b32 s{sT2}, s{sNA}, s{sNB}")
    for r_, d_ in ((sT1, sTMAX), (sT2, sTG)):
        a(f"s_max_i32 s{r_}, s{r_}, 1")
        a(f"s_add_u32 s{r_}, s{r_}, 31")
        a(f"s_lshr_b32 s{r_}, s{r_}, 5")
        a(f"s_min_u32 s{d_}, s{r_}, {R}")
    a(f"s_min_i32 s{sI}, s{sNA}, s{sNB}")
    a(f"s_sub_i32 s{sNA}, s{sNA}, {R*32}")
    a(f"s_sub_i32 s{sNB}, s{sNB}, {R*32}")
    a("s_waitcnt vmcnt(2)")
    a("s_barrier")
    stamp(a, 4)
    stamp(a, 0, it=True)

    def l_reads(t):
        slot = t & 3
        return [f"ds_read_b128 {vr(AF,4)}, v{XA} offset:{slot*8192}",
                f"ds_read_b128 {vr(AF+4,4)}, v{XA+1} offset:{slot*8192}",
                f"ds_read_b128 {vr(AF+8,4)}, v{vSA} offset:{t*2048}",
                f"ds_read_b128 {vr(AF+12,4)}, v{vSA+1} offset:{t*2048}",
                f"ds_read_b128 {vr(AF+16,4)}, v{vEA} offset:{t*1024}"]

    def l_mfmas(Tn):
        Bs = [ID, ID + 4, Q, Q + 4, W3]
        return [f"{MF} {vr(Tn,16)}, {vr(AF+4*k,4)}, {vr(Bs[k],4)}, {'0' if k == 0 else vr(Tn,16)}" for k in range(5)]

    def s_reads(t):
        return [f"ds_read_b64_tr_b16 {vr(SF+4*s+2*jj,2)}, v{vST+jj} offset:{t*2048+s*1024}"
                for s in range(2) for jj in range(2)]

    def v_ops(Tc):
        ops = []
        for q in range(2):
            x = X + 8 * q
            for i in range(8):
                ops.append(f"v_exp_f32 v{x+i}, v{Tc+8*q+i}")
            for i in range(4):
                ops.append(f"v_pk_add_f32 {vr(x+2*i,2)}, {vr(x+2*i,2)}, 1.0 op_sel_hi:[1,0]")
            for i in range(8):
                ops.append(f"v_rcp_f32 v{x+i}, v{x+i}")
            for i in range(4):
                ops.append(f"v_pk_mul_f32 {vr(x+2*i,2)}, {vr(x+2*i,2)}, {vr(Tc+8*q+2*i,2)}")
            for k in range(4):
                ops.append(f"v_cvt_pk_bf16_f32 v{MS+4*q+k}, v{x+2*k}, v{x+2*k+1}")
        return ops

    def agg(s):
        return f"{MF} {vr(G,16)}, {vr(MS+4*s,4)}, {vr(SF+4*s,4)}, {vr(G,16)}"

    def fr_ld(f):
        if f < 4:
            return [f"buffer_load_dwordx4 {vr(WF+4*f,4)}, v{vL16}, s[{RWS}:{RWS+3}], s{sFR} offen offset:{f*1024} sc1"]
        return [f"buffer_load_dwordx4 {vr(WF+4*f,4)}, v{vQA}, s[{RWS}:{RWS+3}], s{sFR} offen offset:{(f-4)*1024} sc1"]

    def n_rd(j, nt):
        return [f"v_xor_b32 v{t0+nt}, {j*64}, v{vNB+nt}", f"ds_read_b128 {vr(NF+4*nt,4)}, v{t0+nt}"]

    def u_mf(j, nt):
        return f"{MF16} {vr(U+4*nt,4)}, {vr(WF+4*j,4)}, {vr(NF+4*nt,4)}, {'0' if j == 0 else vr(U+4*nt,4)}"

    a.c("---- chain(0)")
    b = Block(a)
    for r_ in l_reads(0):
        b(r_)
    for r_ in s_reads(0):
        b(r_)
    a(f"v_add_u32 v{vQA}, 4096, v{vL16}")
    a(f"s_sub_u32 s{sTMAX}, s{sTMAX}, s{sTG}")
    a(f"s_cmp_eq_u32 s{sG}, 1")
    a("s_cselect_b64 vcc, -1, 0")
    mf0 = l_mfmas(T[0])
    b(mf0[0])
    a(f"s_cmp_lt_u32 s{sQ}, 2")
    a("s_cbranch_scc1 L_e0done")
    a(f"s_mov_b32 m0, s{sEM}")
    a(f"buffer_load_dwordx4 v{CK2+2}, s[{REA}:{REA+3}], 0 offen lds")
    a.label("L_e0done")
    x_dma0(2)
    for m_ in mf0[1:]:
        b(m_)
    x_dma0(3)
    a("s_waitcnt vmcnt(4) lgkmcnt(0)")
    b.pend = []
    a("s_barrier")
    for r_ in l_reads(1):
        a(r_)

    def e_jit(tile, lbl):
        a(f"s_cmp_eq_u32 s{sQ}, {tile & 3}")
        a(f"s_cbranch_scc0 {lbl}")
        a(f"s_add_u32 m0, s{sEM}, {(tile >> 2) * 4096}")
        a(f"buffer_load_dwordx4 v{vEI}, s[{REA}:{REA+3}], 0 offen lds")
        a.label(lbl)
    for i in range(2):
        a(f"v_mov_b32 v{CK2+i}, v{LXV+16+2*i}")
    vm_ops = [0, 0, 1, 1, 2, 2, 3, 3]
    U_FIRST = 4
    SLOW_T = 7
    BTAIL = 48 if "btail" in Opt.exp else None
    for t in range(R - 1):
        a(f"s_cmp_le_u32 s{sTG}, {t+1}")
        a(f"s_cbranch_scc1 L_exit{t&1}{'s' if t <= SLOW_T else ''}")
        idx = [i for i, o in enumerate(vm_ops) if o == t + 2]
        vmw = f"vmcnt({len(vm_ops) - 1 - max(idx)})" if idx else ""
        a("s_waitcnt lgkmcnt(0)")
        a(f"s_cbranch_vccnz L_nba{t}")
        if vmw:
            a(f"s_waitcnt {vmw}")
        a("s_barrier")
        a.label(f"L_nba{t}")
        if t < 9:
            stamp(a, t + 1, it=True)
        mf = l_mfmas(T[(t + 1) & 1])
        vo = v_ops(T[t & 1])
        ev = {}

        def at(p, t_):
            ev.setdefault(p, []).append(t_)
        do_x = t + 5 < R
        e_blk = (t + 5) // 4 if (t + 5) % 4 == 0 and do_x else None
        for k, p in enumerate([0, 3, 12, 15, 24]):
            at(p, mf[k])
        at(30, agg(0))
        j = t - U_FIRST
        if 0 <= j <= 3:
            for nt in range(3):
                at(40 + nt, u_mf(j, nt))
        bbar = [f"s_cbranch_vccz L_nbb{t}"] + ([f"s_waitcnt {vmw}"] if vmw else []) + ["s_barrier", f"L_nbb{t}:"]
        if BTAIL:
            bbar.insert(1, "s_setprio 1")
            for t_ in bbar:
                at(BTAIL, t_)
        for p, t_ in enumerate(vo):
            for t2_ in ev.get(p, []):
                a(t2_)
            a(t_)
        if do_x:
            for q in range(2):
                a(f"v_lshl_or_b32 v{vLI+2*q}, v{vLI+2*q}, 8, v{vXC+q}")
        if e_blk is not None:
            a(f"v_lshl_or_b32 v{vEI}, v{vEI}, 5, v{vEC}")
        if -1 <= j <= 2:
            for nt in range(3):
                a(n_rd(j + 1, nt)[0])
        a(agg(1))
        if BTAIL:
            a("s_setprio 0")
        else:
            for t_ in bbar:
                a(t_)
        if t + 2 < R:
            for t_ in l_reads(t + 2):
                a(t_)
        for t_ in s_reads(t + 1):
            a(t_)
        if -1 <= j <= 2:
            for nt in range(3):
                a(n_rd(j + 1, nt)[1])
        if t == 0:
            for k in (4,):
                if k == 4:
                    e_jit(4, "L_noe_p")
                for q in range(2):
                    a(f"s_add_u32 m0, s{sM0}, {(k&3)*8192+q*1024}")
                    a(f"buffer_load_dwordx4 v{CK2+q}, s[{RP}:{RP+3}], 0 offen sc1 lds")
                    vm_ops.append(k)
        if do_x:
            e_jit(t + 5, f"L_noe{t}")
        if t <= SLOW_T:
            for t_ in fr_ld(t):
                a(t_)
            vm_ops.append(-1)
        if do_x:
            for q in range(2):
                a(f"s_add_u32 m0, s{sM0}, {((t+5)&3)*8192+q*1024}")
                a(f"buffer_load_dwordx4 v{vLI+2*q}, s[{RP}:{RP+3}], 0 offen sc1 lds")
                vm_ops.append(t + 5)
        if t + 6 < R:
            a(f"ds_read_b128 {vr(vLI,4)}, v{vLX} offset:{(t+6)*256}")
        if (t + 6) % 4 == 0 and t + 6 < R:
            a(f"ds_read_b32 v{vEI}, v{vLE} offset:{4+((t+6)//4)*1024}")
    a(f"s_branch L_exit{(R-1)&1}")

    for u in (0, 1):
        a.label(f"L_exit{u}")
        vo = v_ops(T[u])
        for p, t_ in enumerate(vo):
            if p == 30:
                a("s_waitcnt lgkmcnt(0)")
                a(agg(0))
            a(t_)
        a(agg(1))
        if u == 0:
            a("s_branch L_extra")

    a.label("L_extra")
    if "nobar" in Opt.exp:
        a(f"s_mov_b32 s{sTMAX}, 0")
    a(f"s_cmp_eq_u32 s{sTMAX}, 0")
    a("s_cbranch_scc1 L_rdone")
    a("s_barrier")
    a(f"s_sub_u32 s{sTMAX}, s{sTMAX}, 1")
    a("s_branch L_extra")
    a.label("L_rdone")
    stamp(a, 5)
    stamp(a, 10, it=True)
    a(f"s_or_b32 s{sT0}, s{sOV}, s{sOV+1}")
    a(f"s_or_b32 s{sT0}, s{sT0}, s{sOV+2}")
    a(f"s_max_i32 s{sT1}, s{sNA}, s{sNB}")
    a(f"s_max_i32 s{sT1}, s{sT1}, 0")
    a(f"s_or_b32 s{sT0}, s{sT0}, s{sT1}")
    a("s_cbranch_scc1 L_more")

    a.c("---- epilogue: agg exchange through dead one-hot tiles 0..3 (a barrier first when a group has fewer than 6 tiles)")
    a(f"s_cmp_le_i32 s{sI}, {5*32}")
    a("s_cbranch_scc1 L_agbar")
    a.label("L_ag")
    a(f"s_mov_b32 s{sT1}, {f32(-0.6931471805599453)}")
    a(f"s_mul_i32 s{sT0}, s{sG}, {R*2048}")
    a(f"s_lshl_b32 s{sT2}, s{sQ}, 11")
    a(f"s_add_u32 s{sT0}, s{sT0}, s{sT2}")
    a(f"s_add_u32 s{sT0}, s{sT0}, {ST}")
    a(f"v_add_u32 v{t1}, s{sT0}, v{vL16}")
    for i in range(8):
        a(f"v_mul_f32 v{G+2*i}, s{sT1}, v{G+2*i}")
        a(f"v_mul_f32 v{G+2*i+1}, s{sT1}, v{G+2*i+1}")
        a(f"v_cvt_pk_bf16_f32 v{MS+i}, v{G+2*i}, v{G+2*i+1}")
    a(f"ds_write_b128 v{t1}, {vr(MS,4)}")
    a(f"ds_write_b128 v{t1}, {vr(MS+4,4)} offset:1024")
    a(f"s_lshl_b32 s{sT0}, s{sW}, 10")
    a(f"s_add_u32 s{sT0}, s{sT0}, {NT}")
    a(f"v_add_u32 v{t0}, s{sT0}, v{vL16}")
    a("s_waitcnt vmcnt(0) lgkmcnt(0)")
    a("s_barrier")
    b = Block(a)
    BF = T[0]
    for j in range(4):
        for nt in range(3):
            b(f"ds_read_b128 {vr(BF+(3*j+nt)*4,4)}, v{vAG+nt} offset:{j*2048}")
    for j in range(4):
        for nt in range(3):
            b(f"{MF16} {vr(U+4*nt,4)}, {vr(WF+16+4*j,4)}, {vr(BF+(3*j+nt)*4,4)}, {vr(U+4*nt,4)}")
    a("s_cmp_eq_u32 s2, 0")
    a("s_cbranch_scc0 L_nononce")
    a(f"v_mov_b32 v{t3}, 0")
    a(f"v_mov_b32 v{t4}, s{sTAG}")
    a(f"buffer_store_dword v{t4}, v{t3}, s[{RWS}:{RWS+3}], 0 offen")
    a.label("L_nononce")
    a("s_nop 3")
    Y = AF
    for i in range(12):
        a(f"v_mul_f32 v{Y+i}, s{sC}, v{U+i}")
    for i in range(12):
        a(f"v_exp_f32 v{Y+i}, v{Y+i}")
    for i in range(6):
        a(f"v_pk_add_f32 {vr(Y+2*i,2)}, {vr(Y+2*i,2)}, 1.0 op_sel_hi:[1,0]")
    for i in range(12):
        a(f"v_rcp_f32 v{Y+i}, v{Y+i}")
    for i in range(6):
        a(f"v_pk_mul_f32 {vr(Y+2*i,2)}, {vr(Y+2*i,2)}, {vr(U+2*i,2)}")
    for i in range(6):
        a(f"v_cvt_pk_bf16_f32 v{MS+i}, v{Y+2*i}, v{Y+2*i+1}")
    for nt in range(3):
        a(f"ds_write_b64 v{vOW+nt}, {vr(MS+2*nt,2)}")
    a("s_waitcnt lgkmcnt(0)")
    a("s_barrier")
    a(f"ds_read_b128 {vr(T[0],4)}, v{t0}")
    a(f"s_cmp_lt_u32 s{sW}, 2")
    a("s_cbranch_scc0 L_st1")
    a(f"ds_read_b128 {vr(T[0]+4,4)}, v{t0} offset:8192")
    a("s_waitcnt lgkmcnt(0)")
    a(f"buffer_store_dwordx4 {vr(T[0]+4,4)}, v{vNO+1}, s[{ROUT}:{ROUT+3}], s{sB8} offen")
    a.label("L_st1")
    a("s_waitcnt lgkmcnt(0)")
    a(f"buffer_store_dwordx4 {vr(T[0],4)}, v{vNO}, s[{ROUT}:{ROUT+3}], s{sB8} offen")
    if Opt.stamps:
        a.label("L_dump")
        a("s_waitcnt vmcnt(0)")
        stamp(a, 6)
        a("s_waitcnt lgkmcnt(0)")
        a(f"s_lshl_b32 s{sT0}, s2, 3")
        a(f"s_add_u32 s{sT0}, s{sT0}, s{sW}")
        a(f"s_lshl_b32 s{sT0}, s{sT0}, 6")
        a(f"s_add_u32 s{sT0}, s{sT0}, {WS_STAMP}")
        a(f"v_mov_b32 v{t0}, 0")
        for k in range(11):
            a(f"v_mov_b32 v{AF+k}, s{sST+2*k}")
        a(f"v_mov_b32 v{AF+11}, s{sTG}")
        for k in range(3):
            a(f"buffer_store_dwordx4 {vr(AF+4*k,4)}, v{t0}, s[{RWS}:{RWS+3}], s{sT0} offen offset:{16*k}")
    a.label("L_end")
    a("s_endpgm")

    a.label("L_role02")
    a(f"s_cmp_eq_u32 s{sROLE}, 0")
    a("s_cbranch_scc0 L_role2")
    a("s_waitcnt vmcnt(0) lgkmcnt(0)")
    a("s_barrier")
    stamp(a, 1)
    a("s_branch L_b1")

    a.label("L_role2")
    a(f"s_cmp_lt_u32 s{sSP}, 4")
    a(f"s_cselect_b32 s{sT0}, 3, 2")
    a(f"s_cselect_b32 s{sT1}, 1, 2")
    a(f"s_lshl_b32 s{sT1}, s{sT1}, 10")
    a(f"v_lshlrev_b32 v{t0}, s{sT0}, v{vNH}")
    a(f"v_lshl_add_u32 v{t0}, v{vH}, 4, v{t0}")
    a(f"v_add_u32 v{t0}, v{t0}, v{vR4}")
    a(f"s_lshl_b32 s{sT0}, s{sW}, 1")
    a(f"v_lshrrev_b32 v{t1}, 1, v{vC4}")
    a(f"v_add_u32 v{t1}, s{sT0}, v{t1}")
    a(f"v_xor_b32 v{t1}, v{t1}, v{t6}")
    a(f"v_lshlrev_b32 v{t1}, 4, v{t1}")
    a(f"v_lshl_add_u32 v{t1}, v{t7}, 3, v{t1}")
    a(f"v_lshl_add_u32 v{t3}, v{t0}, 8, v{t1}")
    a(f"v_add_u32 v{t4}, s{sT1}, v{t3}")
    a(f"s_lshl_b32 s{sT0}, s{sW}, 13")
    a(f"s_lshl_b32 s{sT1}, s{sSP}, 10")
    a(f"s_add_u32 s{sT0}, s{sT0}, s{sT1}")
    a(f"s_add_u32 s{sT0}, s{sT0}, {WS_FR}")
    a("s_waitcnt vmcnt(0) lgkmcnt(0)")
    a(f"s_add_u32 s{sTAG}, s{sTAG}, 1")
    a("s_barrier")
    stamp(a, 10)
    a(f"s_cmp_gt_u32 s{sSP}, 7")
    a("s_cbranch_scc1 L_r3")
    a(f"ds_read_b64_tr_b16 {vr(WF,2)}, v{t3}")
    a(f"ds_read_b64_tr_b16 {vr(WF+2,2)}, v{t4}")
    a("s_waitcnt lgkmcnt(0)")
    a(f"buffer_store_dwordx4 {vr(WF,4)}, v{vL16}, s[{RWS}:{RWS+3}], s{sT0} offen {SC}")
    a.label("L_r3")
    if "delay" in Opt.exp:
        a("s_sleep 40")
    stamp(a, 7)
    a("s_branch L_b1")

    a.c("---- slow paths")
    a.label("L_repoll")
    a(f"s_lshr_b64 s[{sEX}:{sEX+1}], s[{sT1}:{sT1+1}], 4")
    a(f"s_or_b64 s[{sT1}:{sT1+1}], s[{sT1}:{sT1+1}], s[{sEX}:{sEX+1}]")
    a(f"s_lshr_b64 s[{sEX}:{sEX+1}], s[{sT1}:{sT1+1}], 2")
    a(f"s_or_b64 s[{sT1}:{sT1+1}], s[{sT1}:{sT1+1}], s[{sEX}:{sEX+1}]")
    a(f"s_lshr_b64 s[{sEX}:{sEX+1}], s[{sT1}:{sT1+1}], 1")
    a(f"s_or_b64 s[{sT1}:{sT1+1}], s[{sT1}:{sT1+1}], s[{sEX}:{sEX+1}]")
    for k in range(2):
        a(f"s_and_b32 s{sT1+k}, s{sT1+k}, 0x01010101")
        a(f"s_mul_i32 s{sT1+k}, s{sT1+k}, 255")
    a("s_sleep 2")
    a(f"s_and_b64 exec, s[{sT1}:{sT1+1}], s[{sT1}:{sT1+1}]")
    a("s_cbranch_scc0 L_rp1")
    a(f"buffer_load_dwordx4 {vr(EN,4)}, v{vL16}, s[{RWS}:{RWS+3}], s{sCE} offen {SC}")
    a.label("L_rp1")
    a("s_cmp_lg_u32 vcc_lo, 0")
    a("s_cselect_b32 exec_lo, -1, 0")
    a("s_cmp_lg_u32 vcc_hi, 0")
    a("s_cselect_b32 exec_hi, -1, 0")
    a("s_cbranch_execz L_rp2")
    a(f"buffer_load_dword v{E3}, v{vL4}, s[{RWS}:{RWS+3}], s{sCE} offen offset:1024 {SC}")
    a.label("L_rp2")
    a("s_mov_b64 exec, -1")
    a(f"s_sub_u32 s{sSP}, s{sSP}, 1")
    a("s_waitcnt vmcnt(0)")
    a("s_cbranch_scc0 L_poll")
    a("s_endpgm")
    a.label("L_repollf")
    a("s_mov_b64 exec, vcc")
    poll_flags()
    a("s_mov_b64 exec, -1")
    a(f"s_sub_u32 s{sSP}, s{sSP}, 1")
    a("s_waitcnt vmcnt(0)")
    a("s_cbranch_scc0 L_pollf")
    a("s_endpgm")

    for u in (0, 1):
        a.label(f"L_exit{u}s")
        for f in range(8):
            for t_ in fr_ld(f):
                a(t_)
        a("s_waitcnt vmcnt(0) lgkmcnt(0)")
        for j in range(4):
            for nt in range(3):
                for t_ in n_rd(j, nt):
                    a(t_)
            a("s_waitcnt lgkmcnt(0)")
            for nt in range(3):
                a(u_mf(j, nt))
        a(f"s_branch L_exit{u}")

    a.label("L_agbar")
    a("s_waitcnt lgkmcnt(0)")
    a("s_barrier")
    a("s_branch L_ag")

    a.label("L_bin_ovf")
    a("s_waitcnt lgkmcnt(0)")
    a("s_barrier")
    a(f"ds_read_b32 v{vU}, v{vA} offset:{CN}")
    a(f"v_mov_b32 v{vK}, 0")
    a(f"ds_write_b32 v{PA+1}, v{vK}")
    a(f"v_cmp_gt_u32 vcc, 256, v0")
    a("s_mov_b64 exec, vcc")
    a("s_waitcnt lgkmcnt(0)")
    a(f"v_cmp_lt_u32 vcc, {CAPK}, v{vU}")
    a(f"v_lshlrev_b32 v{vU}, 5, v0")
    for i in range(4):
        a(f"v_mov_b32 v{vF+i}, {OVF_MARK}")
    a("s_mov_b64 exec, vcc")
    for k in range(3):
        a(f"ds_write_b128 v{vU}, {vr(vF,4)} offset:{PL+k*8192}")
        a(f"ds_write_b128 v{vU}, {vr(vF,4)} offset:{PL+k*8192+16}")
    a("s_mov_b64 exec, -1")
    a("s_waitcnt lgkmcnt(0)")
    a("s_barrier")
    a("s_branch L_bin_out")

    a.label("L_markov")
    for (msk, ch) in (("vcc", CK), (f"s[{sT1}:{sT1+1}]", CK + 1)):
        a(f"v_lshrrev_b32 v{t2}, 5, v{ch}")
        a(f"v_lshlrev_b32 v{t2}, 2, v{t2}")
        a(f"v_add_u32 v{t2}, {OVF}, v{t2}")
        a(f"v_lshlrev_b32_e64 v{t3}, v{ch}, 1")
        a(f"s_mov_b64 exec, {msk}")
        a(f"ds_or_b32 v{t2}, v{t3}")
        a("s_mov_b64 exec, -1")
    a("s_branch L_count")

    a.label("L_more")
    a(f"s_cmp_eq_u32 s{sT1}, 0")
    a("s_cbranch_scc1 L_rescan")
    a("s_waitcnt vmcnt(0) lgkmcnt(0)")
    a("s_barrier")
    lds_init(False)
    a("s_waitcnt lgkmcnt(0)")
    a("s_barrier")
    a("s_branch L_round")

    a.label("L_rescan")
    for k in range(3):
        a(f"s_ff1_i32_b32 s{sT0}, s{sOV+k}")
        a(f"s_cmp_lt_i32 s{sT0}, 0")
        a(f"s_cbranch_scc1 L_rs{k}")
        a(f"s_bitset0_b32 s{sOV+k}, s{sT0}")
        a(f"s_add_u32 s{sT0}, s{sT0}, {32*k}")
        a("s_branch L_rsgo")
        a.label(f"L_rs{k}")
    a.label("L_rsgo")
    a(f"s_mul_i32 s{sT1}, s{sT0}, {CH}")
    a(f"v_mov_b32 v{EB}, s{sT1}")
    a(f"v_mov_b32 v{EB+1}, s{sT1}")
    a(f"s_lshl_b32 s{sT1}, s{sT1}, 2")
    a("s_waitcnt vmcnt(0) lgkmcnt(0)")
    a(f"buffer_load_dwordx4 {vr(T[0],4)}, v{vT16}, s[{RDST}:{RDST+3}], s{sT1} offen")
    a(f"buffer_load_dwordx4 {vr(T[0]+4,4)}, v{vT16}, s[{RSRC}:{RSRC+3}], s{sT1} offen")
    a("s_barrier")
    lds_init(True)
    a("s_waitcnt vmcnt(0)")
    a(f"v_lshlrev_b32 v{t1}, 22, v0")
    a(f"v_mov_b32 v{t3}, {CH//4}")
    for j in range(4):
        a(f"v_lshrrev_b32 v{t2}, 8, v{T[0]+j}")
        a(f"v_lshl_or_b32 v{t2}, v{T[0]+4+j}, 6, v{t2}")
        a(f"v_add_u32 v{t4}, {j << 20}, v{t1}")
        a(f"v_or_b32 v{t2}, v{t2}, v{t4}")
        a(f"v_and_b32 v{t4}, 255, v{T[0]+j}")
        a(f"v_cmp_eq_u32 vcc, s2, v{t4}")
        a(f"v_cndmask_b32 v{t2}, -1, v{t2}, vcc")
        a(f"v_cmp_gt_u32 vcc, v{t3}, v0")
        a(f"v_cndmask_b32 v{ENT[j]}, -1, v{t2}, vcc")
    a("s_waitcnt lgkmcnt(0)")
    a("s_barrier")
    a("s_branch L_count")
    a.label("L_code_end")
    return V


def build():
    a = Asm()
    hdr = open("cdna_kernels/%s.s.ref" % NAME).read().split("; Override")[0]
    a.raw(hdr.rstrip())
    a.raw(f"; @launch grid=(256,1,1) block=(512,1,1) lds={LDS}")
    a.raw('.amdgcn_target "amdgcn-amd-amdhsa--gfx950"\n.text')
    V = gen_main(a)
    a.raw('.section .rodata,"a"')
    a.raw(f""".p2align 6
.amdhsa_kernel {NAME}_kernel
  .amdhsa_next_free_vgpr 256
  .amdhsa_next_free_sgpr 102
  .amdhsa_accum_offset 256
  .amdhsa_group_segment_fixed_size 0
  .amdhsa_kernarg_size 72
  .amdhsa_user_sgpr_count 2
  .amdhsa_user_sgpr_kernarg_segment_ptr 1
  .amdhsa_system_sgpr_workgroup_id_x 1
.end_amdhsa_kernel""")
    return a, V


if __name__ == "__main__":
    out = sys.argv[1]
    Opt.exp = set(sys.argv[2:])
    Opt.stamps = "stamps" in Opt.exp
    Opt.cycst = "cyc" in Opt.exp
    a, V = build()
    open(out, "w").write(a.text())
    print("vgprs used:", V.next)
    if "log" in Opt.exp:
        for (ln, pad, t) in a.log:
            print("nop", pad, "before line", ln, t)
```

```python
import struct
import sys
from asmlib import Asm, Ins, Regs, vr, sr

NAME = "standalone__mpnn_edge_mlp__graph"
N, E = 10000, 160000
G1, CH, CAPK = 80, 2000, 24
NPW = 157
R = 13
EA = 65536
XT = EA
W3L = 28672
ST = EA + 2 * R * 1024
LB = ST + 2 * R * 2048
LCAP = 512
NT = LB + 2 * LCAP * 8
MISC = NT - 16
LDS = 163840
assert NT + 10240 == LDS
SCR = 0
CNT = MISC
OVF = MISC + 4
WS_FLAGS = 4096
WS_CELLS = 32768
FSH = 7
WS_FR = 3 << 20
WS_P = (3 << 20) + 65536
WS_SIZE = 8 << 20
WS_STAMP = 7 << 20
OVF_MARK = -2
LOG2E = 1.4426950408889634
SPIN = 200000


def f32(x):
    return "0x%08x" % struct.unpack("<I", struct.pack("<f", x))[0]


class Opt:
    stamps = False
    cycst = False
    exp = set()


RX, REA, RSRC, RDST, RWM, RWU, ROUT, RWS, RP = 4, 8, 12, 16, 20, 24, 28, 32, 36
sW, sG, sQ, sT0, sT1, sT2 = 40, 41, 43, 42 + 5, 44, 45
sT0 = 46
sROLE = 3
sEX = 48
sCAP, sRC = 50, 51
sNA, sNB, sTG, sTMAX, sI = 52, 53, 54, 55, 56
sM0 = 57
sOV = 58
sTAG = 61
sC = 62
sOVR = 64
sSP = 65
sEM = 66
sFR = 67
sM3 = 68
sB8 = 70
sPC = 72
sCE = 74
sFL = 75
sK1 = 76
sST = 80


def stamp(a, k, it=False):
    if ("itst" in Opt.exp) != it:
        return
    if Opt.stamps:
        a(f"{'s_memtime' if Opt.cycst else 's_memrealtime'} s[{sST+2*k}:{sST+2*k+1}]")


class Block:
    def __init__(self, a):
        self.a = a
        self.pend = []

    def __call__(self, t):
        if t.endswith(":"):
            self.a(t)
            return
        ins = Ins(t)
        use = ins.s | ins.d
        last = -1
        for i, dset in enumerate(self.pend):
            if dset & use:
                last = i
        if last >= 0:
            n = len(self.pend) - 1 - last
            self.a(f"s_waitcnt lgkmcnt({n})")
            self.pend = self.pend[last + 1:]
        if ins.is_ds:
            if len(self.pend) >= 15:
                self.a("s_waitcnt lgkmcnt(14)")
                self.pend = self.pend[-14:]
            self.pend.append(ins.d)
        self.a(t)

    def drain(self):
        if self.pend:
            self.a("s_waitcnt lgkmcnt(0)")
            self.pend = []


MF = "v_mfma_f32_32x32x16_bf16"
MF16 = "v_mfma_f32_16x16x32_bf16"
SC = "sc1"


def gen_main(a):
    V = Regs("v", 1, 256)
    vL = V.alloc("L")
    ID = V.alloc("ID", 8, 4)
    W3 = V.alloc("W3", 4)
    Q = V.alloc("Q", 8)
    G = V.alloc("G", 16)
    U = V.alloc("U", 12)
    NF = V.alloc("NF", 12)
    WF = V.alloc("WF", 32)
    T = [V.alloc("T0", 16), V.alloc("T1", 16)]
    X = V.alloc("X", 16)
    AF = V.alloc("AF", 20)
    SF = V.alloc("SF", 8)
    MS = V.alloc("MS", 8)
    vLI = V.alloc("LI", 4)
    EN = V.alloc("EN", 4, 4)
    TT = V.alloc("TT", 8)
    CK2 = V.alloc("CK2", 4)
    PA = NF
    XA = V.alloc("XA", 2)
    vSA = V.alloc("SA", 2)
    vST = V.alloc("ST", 2)
    vXC = V.alloc("XC", 2)
    vXV = V.alloc("XV", 2)
    vNO = V.alloc("NO", 2)
    REL = V.alloc("REL", 4)
    EB = V.alloc("EB", 2)
    CK = V.alloc("CK", 2)
    vNB = V.alloc("NB", 9)
    vAG = vNB + 3
    vOW = vNB + 6
    vEA, vLX, vLE, vEC, vEI, vWD, E3, vL16, vL4, vFL, vFV, vQA, vQB, vT16 = [V.alloc(n) for n in
        ("EA", "LX", "LE", "EC", "EI", "WD", "E3", "L16", "L4", "FL", "FV", "QA", "QB", "T16")]
    LC = V.alloc("LC", 8)
    ENT = [EN, EN + 1, EN + 2, E3]
    TMP = T[1]
    assert X == T[1] + 16
    t0, t1, t2, t3, t4, t5, t6, t7 = [TT + i for i in range(8)]
    vH, vM, vG16, vNH, vR4, vC4, vL15, vK3F = [LC + i for i in range(8)]

    a.raw(f".globl {NAME}_kernel\n.p2align 8\n.type {NAME}_kernel,@function")
    a.label(f"{NAME}_kernel")
    a(f"s_getpc_b64 s[{sPC}:{sPC+1}]")
    for (r_, off) in ((RX, 0), (RWM, 32), (RDST, 24), (RSRC, 16), (RWS, 64), (RWU, 40), (REA, 8), (ROUT, 48)):
        a(f"s_load_dwordx2 s[{r_}:{r_+1}], s[0:1], {off}")
    a("s_cmp_ge_u32 s2, 256")
    a("s_cbranch_scc1 L_end")
    a(f"v_lshlrev_b32 v{t0}, 7, v0")
    a(f"v_min_u32 v{t1}, L_code_end-{NAME}_kernel-8, v{t0}")
    a(f"global_load_dword v{vFV}, v{t1}, s[{sPC}:{sPC+1}]")
    stamp(a, 0)
    a(f"v_lshrrev_b32 v{t1}, 6, v0")
    a(f"v_and_b32 v{vL}, 63, v0")
    a(f"v_readfirstlane_b32 s{sW}, v{t1}")
    a(f"v_lshrrev_b32 v{vG16}, 4, v{vL}")
    a(f"v_and_b32 v{vL15}, 15, v{vL}")
    a(f"v_lshlrev_b32 v{vT16}, 4, v0")
    a(f"s_lshr_b32 s{sG}, s{sW}, 2")
    a(f"s_and_b32 s{sQ}, s{sW}, 3")
    a(f"v_lshlrev_b32 v{t1}, 2, v{vG16}")
    a(f"v_xor_b32 v{t1}, v{t1}, v{vL15}")
    a(f"v_lshlrev_b32 v{t1}, 4, v{t1}")
    a(f"v_lshl_add_u32 v{vWD}, v{vG16}, 8, v{t1}")
    a(f"s_lshl_b32 s{sT0}, s{sQ}, 3")
    a(f"v_add_u32 v{t1}, s{sT0}, v{vG16}")
    a(f"v_xor_b32 v{t2}, v{t1}, v{vL15}")
    a(f"v_and_b32 v{t2}, 15, v{t2}")
    a(f"v_lshlrev_b32 v{vXC}, 4, v{t2}")
    a(f"v_lshl_or_b32 v{vXV}, v{t1}, 8, v{vXC}")
    a(f"v_xor_b32 v{vXV+1}, {1024+64}, v{vXV}")
    a(f"s_lshl_b32 s{sT0}, s{sW}, 2")
    a(f"v_add_u32 v{t3}, s{sT0}, v{vG16}")
    a(f"v_xor_b32 v{t4}, v{t3}, v{vL15}")
    a(f"v_and_b32 v{t4}, 15, v{t4}")
    a(f"v_lshlrev_b32 v{t4}, 4, v{t4}")
    a(f"v_lshl_or_b32 v{vNO}, v{t3}, 17, v{t4}")
    a(f"v_add_u32 v{vNO+1}, {(64 - 39) << 16}, v{vNO}")
    a(f"s_cmp_ge_u32 s{sW}, 5")
    a(f"s_cselect_b32 s{sT0}, {39 << 16}, 0")
    a(f"v_subrev_u32 v{vNO}, s{sT0}, v{vNO}")

    a(f"s_lshl_b32 s{sB8}, s2, 8")
    a(f"v_lshlrev_b32 v{vL16}, 4, v{vL}")
    a(f"s_lshr_b32 s{sNB}, s2, 3")
    a(f"s_lshl_b32 s{sNB}, s{sNB}, 3")
    a(f"s_add_u32 s{sNB}, s{sNB}, s{sW}")
    a(f"s_lshl_b32 s{sNB}, s{sNB}, 10")
    en = [0]

    def early_loads():
        a(f"buffer_load_dwordx4 {vr(EN,4)}, v{vL16}, s[{RWM}:{RWM+3}], s{sNB} offen")
    a(f"s_lshl_b32 s{sM0}, s{sW}, 11")
    for r_, nb in ((RX, N * 256), (RWM, 272 * 256), (RDST, E * 4), (RSRC, E * 4), (RWU, 65536)):
        a(f"s_mov_b32 s{r_+2}, {nb}")
        a(f"s_mov_b32 s{r_+3}, 0x20000")
    a(f"s_cmp_lt_u32 s2, {G1}")
    a("s_cbranch_scc1 L_ld0")
    a(f"s_cmp_lt_u32 s2, {G1+NPW}")
    a("s_cbranch_scc0 L_ld2")
    a(f"s_sub_u32 s{sT1}, s2, {G1}")
    a(f"s_lshl_b32 s{sT1}, s{sT1}, 1")
    a(f"s_add_u32 s{sT1}, s{sT1}, s{sG}")
    a(f"s_lshl_b32 s{sSP}, s{sT1}, 13")
    a(f"s_add_u32 m0, s{sM0}, {XT}")
    a(f"s_lshl_b32 s{sT0}, s{sW}, 12")
    a(f"s_mov_b32 s{sROLE}, 1")
    a("s_waitcnt lgkmcnt(0)")
    a(f"buffer_load_dwordx4 v{vXV}, s[{RX}:{RX+3}], s{sSP} offen lds")
    a(f"s_add_u32 m0, s{sM0}, {XT+1024}")
    a(f"buffer_load_dwordx4 v{vXV+1}, s[{RX}:{RX+3}], s{sSP} offen lds")
    a(f"s_mov_b32 m0, s{sT0}")
    for k in range(4):
        a(f"buffer_load_dwordx4 v{vWD}, s[{RWM}:{RWM+3}], s{sT0} offen offset:{k*1024} lds")
    a("s_branch L_shadow")
    vD, vS = WF, WF + 4
    a.label("L_ld0")
    a(f"s_mul_i32 s{sI}, s2, {CH*4}")
    a(f"s_mov_b32 s{sROLE}, 0")
    a("s_waitcnt lgkmcnt(0)")
    a(f"buffer_load_dwordx4 {vr(vD,4)}, v{vT16}, s[{RDST}:{RDST+3}], s{sI} offen")
    a(f"buffer_load_dwordx4 {vr(vS,4)}, v{vT16}, s[{RSRC}:{RSRC+3}], s{sI} offen")
    a(f"s_load_dword s{sTAG}, s[{RWS}:{RWS+1}], 0")
    early_loads()
    PL, CN = 0, 24576
    FL = CN + 1024
    vK, vB = WF + 8, WF + 12
    vA, vT, vU, vOne = WF + 16, WF + 17, WF + 18, WF + 19
    vF = WF + 20
    for i in range(4):
        a(f"v_mov_b32 v{vF+i}, -1")
    a(f"v_mov_b32 v{vOne}, 0")
    a(f"v_lshlrev_b32 v{vA}, 2, v0")
    for k in range(3):
        a(f"ds_write_b128 v{vT16}, {vr(vF,4)} offset:{PL+k*8192}")
    a(f"ds_write_b32 v{vA}, v{vOne} offset:{CN}")
    a(f"s_mov_b32 s{RWS+2}, {WS_SIZE}")
    a(f"s_mov_b32 s{RWS+3}, 0x20000")
    a(f"v_mov_b32 v{vOne}, 1")
    a(f"v_cmp_gt_u32 vcc, {CH//4}, v0")
    a(f"v_lshlrev_b32 v{vU}, 22, v0")
    a(f"v_lshrrev_b32 v{PA}, 3, v0")
    a(f"v_mul_u32_u24 v{PA}, {G1*128}, v{PA}")
    a(f"v_and_b32 v{vK}, 7, v0")
    a(f"v_lshl_add_u32 v{PA}, v{vK}, 4, v{PA}")
    a(f"v_mov_b32 v{PA+1}, {FL}")
    a(f"s_lshl_b32 s{sT0}, s2, 7")
    a(f"s_add_u32 s{sT0}, s{sT0}, {WS_CELLS}")
    a("s_waitcnt lgkmcnt(0)")
    a(f"s_add_u32 s{sTAG}, s{sTAG}, 1")
    a("s_barrier")
    a("s_mov_b64 exec, vcc")
    a("s_waitcnt vmcnt(2)")
    stamp(a, 10)
    for j in range(4):
        a(f"v_and_b32 v{vB+j}, 255, v{vD+j}")
        a(f"v_lshlrev_b32 v{PA+2+j}, 2, v{vB+j}")
    for j in range(4):
        a(f"ds_add_rtn_u32 v{vK+j}, v{PA+2+j}, v{vOne} offset:{CN}")
    a("s_waitcnt vmcnt(1)")
    for j in range(4):
        a(f"v_lshrrev_b32 v{vD+j}, 8, v{vD+j}")
        a(f"v_lshl_or_b32 v{vD+j}, v{vS+j}, 6, v{vD+j}")
        a(f"v_or_b32 v{vD+j}, v{vD+j}, v{vU}")
        if j < 3:
            a(f"v_add_u32 v{vU}, {1 << 20}, v{vU}")
        a(f"v_lshlrev_b32 v{vB+j}, 5, v{vB+j}")
    for j in range(4):
        a(f"s_waitcnt lgkmcnt({3-j})")
        a(f"v_min_u32 v{vS+j}, {CAPK-1}, v{vK+j}")
        a(f"v_lshrrev_b32 v{vT}, 3, v{vS+j}")
        a(f"v_lshl_add_u32 v{vB+j}, v{vT}, 13, v{vB+j}")
        a(f"v_and_b32 v{vT}, 7, v{vS+j}")
        a(f"v_lshl_add_u32 v{vB+j}, v{vT}, 2, v{vB+j}")
    a(f"v_max3_u32 v{vU}, v{vK}, v{vK+1}, v{vK+2}")
    a(f"v_max_u32 v{vU}, v{vU}, v{vK+3}")
    a(f"v_cmp_le_u32 vcc, {CAPK}, v{vU}")
    for j in range(4):
        a(f"ds_write_b32 v{vB+j}, v{vD+j} offset:{PL}")
    a("s_mov_b64 exec, vcc")
    a(f"ds_write_b32 v{PA+1}, v{vOne}")
    a("s_mov_b64 exec, -1")
    vO = [WF, WF + 4, WF + 20, WF + 24]
    a("s_waitcnt lgkmcnt(0)")
    a("s_barrier")
    a.label("L_bin_out")
    a(f"ds_read_b32 v{vU}, v{PA+1}")
    for k in range(4):
        a(f"ds_read2st64_b32 {vr(vO[k],2)}, v{vA} offset0:{k*8} offset1:{k*8+32}")
        a(f"ds_read_b32 v{vO[k]+2}, v{vA} offset:{k*2048+16384}")
    for k in range(4):
        a(f"v_mov_b32 v{vO[k]+3}, s{sTAG}")
    a("s_waitcnt lgkmcnt(8)")
    a(f"v_readfirstlane_b32 s{sT1}, v{vU}")
    a(f"s_cmp_lg_u32 s{sT1}, 0")
    a("s_cbranch_scc1 L_bin_ovf")
    for k in range(4):
        a(f"s_waitcnt lgkmcnt({6-2*k})")
        a(f"buffer_store_dwordx4 {vr(vO[k],4)}, v{PA}, s[{RWS}:{RWS+3}], s{sT0} offen {SC}")
        if k < 3:
            a(f"s_add_u32 s{sT0}, s{sT0}, {64*G1*128}")
    stamp(a, 7)
    a("s_branch L_shadow0")


    a.label("L_ld2")
    a(f"s_sub_u32 s{sSP}, s2, {G1+NPW}")
    a(f"s_lshl_b32 s{sT0}, s{sW}, 10")
    a(f"s_lshl_b32 s{sT1}, s{sSP}, 13")
    a(f"s_add_u32 s{sT1}, s{sT1}, s{sT0}")
    a(f"s_mov_b32 m0, s{sT0}")
    a(f"s_mov_b32 s{sROLE}, 2")
    a("s_waitcnt lgkmcnt(0)")
    a(f"buffer_load_dwordx4 v{vWD}, s[{RWU}:{RWU+3}], s{sT1} offen lds")

    a.label("L_shadow")
    a(f"s_load_dword s{sTAG}, s[{RWS}:{RWS+1}], 0")
    a.label("L_shadow0")

    def lds_init(with_misc):
        z = X
        for i in range(4):
            a(f"v_mov_b32 v{z+i}, 0")
        a(f"v_add_u32 v{z+8}, {ST}, v{vT16}")
        a(f"v_cmp_ne_u32 vcc, 511, v0")
        a(f"v_mov_b32 v{z+4}, 0x7fffff")
        for k in range(6):
            a(f"ds_write_b128 v{z+8}, {vr(z,4)} offset:{k*8192}")
        a(f"s_cmp_eq_u32 s{sG}, 0")
        a(f"s_cbranch_scc0 L_li{lds_init.n}")
        a(f"ds_write_b128 v{z+8}, {vr(z,4)} offset:{6*8192}")
        a.label(f"L_li{lds_init.n}")
        lds_init.n += 1
        if with_misc:
            a(f"v_cndmask_b32 v{z+4}, 0, v{z+4}, vcc")
        for i in range(1, 4):
            a(f"v_mov_b32 v{z+4+i}, v{z+4}")
        if with_misc:
            a(f"ds_write_b128 v{z+8}, {vr(z+4,4)} offset:{LB-ST}")
        else:
            a(f"s_and_saveexec_b64 s[{sEX}:{sEX+1}], vcc")
            a(f"ds_write_b128 v{z+8}, {vr(z+4,4)} offset:{LB-ST}")
            a(f"s_mov_b64 exec, s[{sEX}:{sEX+1}]")
    lds_init.n = 0
    lds_init(True)

    for r_, nb in ((RWS, WS_SIZE), (REA, E * 32), (ROUT, N * 256), (RP, N * 256)):
        a(f"s_mov_b32 s{r_+2}, {nb}")
        a(f"s_mov_b32 s{r_+3}, 0x20000")
    a(f"s_add_u32 s{RP}, s{RWS}, {WS_P}")
    a(f"s_addc_u32 s{RP+1}, s{RWS+1}, 0")
    a(f"s_mov_b32 s{sC}, {f32(-LOG2E)}")
    a(f"s_mov_b32 s{sC+1}, {f32(-LOG2E)}")
    a(f"v_lshrrev_b32 v{vH}, 5, v{vL}")
    a(f"v_and_b32 v{vM}, 31, v{vL}")
    a(f"v_and_b32 v{vNH}, 1, v{vG16}")
    a(f"v_bfe_u32 v{vR4}, v{vL}, 2, 2")
    a(f"v_and_b32 v{vC4}, 3, v{vL}")
    a(f"v_lshlrev_b32 v{vL4}, 2, v{vL}")
    a(f"v_xor_b32 v{vXC+1}, 64, v{vXC}")
    cn = [0]

    def common_loads():
        n = cn[0]
        cn[0] += 1
        s0 = sNA
        g = []
        pre = [f"s_lshl_b32 s{s0}, s{sW}, 12", f"s_add_u32 s{s0}, s{s0}, 32768", f"s_mov_b32 m0, s{s0}", "s_nop 0"]
        for k in range(4):
            g.append((pre if k == 0 else []) + [f"buffer_load_dwordx4 v{vWD}, s[{RWM}:{RWM+3}], s{s0} offen offset:{k*1024} lds"])
        g.insert(0, [
            f"s_lshl_b32 s{s0}, s{sW}, 10",
            f"s_add_u32 m0, s{s0}, {NT}",
            "s_nop 0",
            f"buffer_load_dwordx4 v{vNO}, s[{RX}:{RX+3}], s{sB8} offen lds"])
        g.append([
            f"s_lshl_b32 s{s0}, s{sW}, 10",
            f"s_cmp_lt_u32 s{sW}, 2",
            f"s_cbranch_scc0 L_ld_w3_{n}",
            f"s_add_u32 m0, s{s0}, {NT+8192}",
            "s_nop 0",
            f"buffer_load_dwordx4 v{vNO+1}, s[{RX}:{RX+3}], s{sB8} offen lds",
            f"s_branch L_ld_done_{n}",
            f"L_ld_w3_{n}:",
            f"s_min_u32 s{s0}, s{s0}, {5*1024}",
            f"s_add_u32 m0, s{s0}, {W3L-2048}",
            f"s_add_u32 s{s0}, s{s0}, {65536-2048}",
            f"buffer_load_dwordx4 v{vWD}, s[{RWM}:{RWM+3}], s{s0} offen lds",
            f"L_ld_done_{n}:"])
        return g

    a(f"s_cmp_eq_u32 s{sROLE}, 1")
    a("s_cbranch_scc1 L_sh2")
    for grp in common_loads():
        for t in grp:
            a(t)
    a.label("L_sh2")
    a(f"v_lshrrev_b32 v{t0}, 1, v{vC4}")
    a(f"v_lshl_add_u32 v{t5}, v{vNH}, 1, v{t0}")
    a(f"s_lshl_b32 s{sT0}, s{sQ}, 2")
    a(f"v_add_u32 v{t0}, s{sT0}, v{t5}")
    a(f"v_lshlrev_b32 v{t6}, 2, v{vR4}")
    a(f"v_xor_b32 v{t0}, v{t0}, v{t6}")
    a(f"v_lshlrev_b32 v{t0}, 4, v{t0}")
    a(f"v_and_b32 v{t7}, 1, v{vC4}")
    a(f"v_lshl_add_u32 v{t0}, v{t7}, 3, v{t0}")
    a(f"v_lshl_add_u32 v{t4}, v{vH}, 3, v{vR4}")
    a(f"v_lshl_add_u32 v{vQB}, v{t4}, 8, v{t0}")
    a(f"v_lshl_add_u32 v{t0}, v{t7}, 1, v{vNH}")
    a(f"v_add_u32 v{t0}, s{sT0}, v{t0}")
    a(f"v_xor_b32 v{t0}, v{t0}, v{t6}")
    a(f"v_lshlrev_b32 v{t0}, 4, v{t0}")
    a(f"v_lshrrev_b32 v{t1}, 1, v{vC4}")
    a(f"v_lshl_add_u32 v{t0}, v{t1}, 3, v{t0}")
    a(f"v_lshl_add_u32 v{PA}, v{t4}, 8, v{t0}")
    a(f"v_and_b32 v{t0}, 15, v{vM}")
    a(f"v_xor_b32 v{t1}, v{t0}, v{vH}")
    a(f"v_lshlrev_b32 v{t1}, 4, v{t1}")
    a(f"v_lshl_add_u32 v{t1}, v{vM}, 8, v{t1}")
    a(f"s_lshl_b32 s{sT1}, s{sG}, 13")
    a(f"s_add_u32 s{sT2}, s{sT1}, {XT}")
    a(f"v_add_u32 v{AF}, s{sT2}, v{t1}")
    for s in range(1, 8):
        a(f"v_xor_b32 v{AF+s}, {s*32}, v{AF}")
    a(f"v_lshl_add_u32 v{t1}, v{vH}, 1, s{sT0}")
    a(f"v_xor_b32 v{t1}, v{t1}, v{t0}")
    a(f"v_lshlrev_b32 v{t1}, 4, v{t1}")
    a(f"v_lshl_add_u32 v{t1}, v{vM}, 8, v{t1}")
    a(f"v_add_u32 v{PA+1}, s{sT1}, v{t1}")
    a(f"v_xor_b32 v{PA+2}, 16, v{PA+1}")
    a(f"v_add_u32 v{PA+3}, s{sM0}, v{vL16}")
    a(f"v_and_b32 v{t0}, 0x13, v{vM}")
    a(f"v_and_b32 v{t1}, 4, v{vM}")
    a(f"v_lshl_or_b32 v{t0}, v{t1}, 1, v{t0}")
    a(f"v_and_b32 v{t1}, 8, v{vM}")
    a(f"v_lshrrev_b32 v{t1}, 1, v{t1}")
    a(f"v_or_b32 v{t0}, v{t0}, v{t1}")
    a(f"v_min_u32 v{t0}, 19, v{t0}")
    a(f"s_mul_i32 s{sT1}, s{sG}, 20")
    a(f"v_add_u32 v{t0}, s{sT1}, v{t0}")
    a(f"v_xor_b32 v{t1}, v{t0}, v{vH}")
    a(f"v_and_b32 v{t1}, 15, v{t1}")
    a(f"v_lshlrev_b32 v{t1}, 4, v{t1}")
    a(f"v_lshl_add_u32 v{t1}, v{t0}, 8, v{t1}")
    a(f"v_add_u32 v{AF+8}, {NT}, v{t1}")
    for s in range(1, 8):
        a(f"v_xor_b32 v{AF+8+s}, {s*32}, v{AF+8}")
    a(f"v_and_b32 v{t0}, 24, v{vM}")
    a(f"v_and_b32 v{t1}, 1, v{vM}")
    a(f"v_lshl_or_b32 v{t0}, v{t1}, 2, v{t0}")
    a(f"v_bfe_u32 v{t1}, v{vM}, 1, 2")
    a(f"v_or_b32 v{t0}, v{t0}, v{t1}")
    a(f"v_add_u32 v{t1}, s{sT0}, v{vH}")
    a(f"v_xor_b32 v{t1}, v{t1}, v{t0}")
    a(f"v_and_b32 v{t1}, 15, v{t1}")
    a(f"v_lshlrev_b32 v{t1}, 4, v{t1}")
    a(f"v_lshl_add_u32 v{t1}, v{t0}, 8, v{t1}")
    a(f"s_lshl_b32 s{sT1}, s{sG}, 15")
    a(f"v_add_u32 v{XA}, s{sT1}, v{t1}")
    a(f"v_xor_b32 v{XA+1}, 32, v{XA}")
    a(f"s_mul_i32 s{sEM}, s{sG}, {R*1024}")
    a(f"s_add_u32 s{sEM}, s{sEM}, {EA}")
    a(f"v_bfe_u32 v{t0}, v{vM}, 3, 1")
    a(f"v_xor_b32 v{t0}, v{t0}, v{vH}")
    a(f"v_lshlrev_b32 v{t0}, 4, v{t0}")
    a(f"v_lshl_add_u32 v{t0}, v{vM}, 5, v{t0}")
    a(f"v_add_u32 v{vEA}, s{sEM}, v{t0}")
    a(f"s_lshl_b32 s{sT1}, s{sQ}, 10")
    a(f"s_add_u32 s{sEM}, s{sEM}, s{sT1}")
    a(f"s_mul_i32 s{sT1}, s{sG}, {R*2048}")
    a(f"s_add_u32 s{sT1}, s{sT1}, {ST}")
    a(f"v_bfe_u32 v{t0}, v{vM}, 2, 2")
    a(f"v_xor_b32 v{t0}, v{t0}, v{vH}")
    a(f"v_lshlrev_b32 v{t0}, 4, v{t0}")
    a(f"v_lshl_add_u32 v{t0}, v{vM}, 6, v{t0}")
    a(f"v_add_u32 v{vSA}, s{sT1}, v{t0}")
    a(f"v_xor_b32 v{vSA+1}, 32, v{vSA}")
    a(f"v_xor_b32 v{t0}, v{t5}, v{vH}")
    a(f"v_lshlrev_b32 v{t0}, 4, v{t0}")
    a(f"v_lshl_add_u32 v{t0}, v{t7}, 3, v{t0}")
    a(f"v_lshl_add_u32 v{t1}, v{vH}, 2, v{vR4}")
    a(f"v_lshl_add_u32 v{t0}, v{t1}, 6, v{t0}")
    a(f"v_add_u32 v{vST}, s{sT1}, v{t0}")
    a(f"v_xor_b32 v{vST+1}, 32, v{vST}")
    a(f"v_add_u32 v{vST+1}, 512, v{vST+1}")
    a(f"s_lshl_b32 s{sT1}, s{sG}, 12")
    a(f"s_add_u32 s{sT1}, s{sT1}, {LB}")
    a(f"s_lshl_b32 s{sT2}, s{sQ}, 6")
    a(f"s_add_u32 s{sT2}, s{sT2}, s{sT1}")
    a(f"v_lshl_add_u32 v{vLX}, v{vG16}, 4, s{sT2}")
    a(f"v_lshrrev_b32 v{t0}, 1, v{vL}")
    a(f"s_lshl_b32 s{sT2}, s{sQ}, 8")
    a(f"s_add_u32 s{sT2}, s{sT2}, s{sT1}")
    a(f"v_lshl_add_u32 v{vLE}, v{t0}, 3, s{sT2}")
    a(f"v_xor_b32 v{vEC}, v{vL}, v{vG16}")
    a(f"v_and_b32 v{vEC}, 1, v{vEC}")
    a(f"v_lshlrev_b32 v{vEC}, 4, v{vEC}")
    a(f"s_mul_i32 s{sCE}, s2, {G1}")
    a(f"s_mul_i32 s{sT1}, s{sW}, 10")
    a(f"s_add_u32 s{sCE}, s{sCE}, s{sT1}")
    a(f"s_lshl_b32 s{sCE}, s{sCE}, 7")
    a(f"s_add_u32 s{sCE}, s{sCE}, {WS_CELLS}")
    a(f"v_lshrrev_b32 v{CK}, 3, v{vL}")
    a(f"v_add_u32 v{CK}, s{sT1}, v{CK}")
    a(f"s_add_u32 s{sT1}, s{sT1}, 8")
    a(f"v_add_u32 v{CK+1}, s{sT1}, v{vH}")
    a(f"v_mul_u32_u24 v{EB}, {CH}, v{CK}")
    a(f"v_mul_u32_u24 v{EB+1}, {CH}, v{CK+1}")
    a(f"s_mul_i32 s{sFL}, s{sW}, {22 << FSH}")
    a(f"s_add_u32 s{sFL}, s{sFL}, {WS_FLAGS}")
    a(f"v_min_u32 v{vFL}, 21, v{vL}")
    a(f"v_lshlrev_b32 v{vFL}, {FSH}, v{vFL}")
    a(f"v_cmp_eq_u32 s[{sM3}:{sM3+1}], 3, v{vC4}")
    a(f"s_mov_b32 s{sCAP}, {R*32}")
    a(f"s_mov_b32 s{sOVR}, 0")
    a(f"v_mov_b32 v{vK3F}, 0x3f80")

    a(f"s_cmp_eq_u32 s{sROLE}, 1")
    a("s_cbranch_scc0 L_role02")

    def late_consts():
        a(f"v_lshrrev_b32 v{t0}, 1, v{vM}")
        a(f"v_lshlrev_b32 v{t1}, 2, v{vH}")
        a(f"v_sub_u32 v{t0}, v{t0}, v{t1}")
        a(f"v_lshlrev_b32 v{t1}, 4, v{vM}")
        a(f"v_lshlrev_b32 v{t1}, v{t1}, v{vK3F}")
        for s in range(2):
            for r_ in range(4):
                a(f"v_cmp_eq_u32 vcc, {8*s+r_}, v{t0}")
                a(f"v_mov_b32 v{G+8*s+2*r_}, 0")
                a(f"v_mov_b32 v{G+8*s+2*r_+1}, 0")
                a(f"v_cndmask_b32 v{ID+4*s+r_}, 0, v{t1}, vcc")
        a(f"s_lshl_b32 s{sM0}, s{sG}, 15")
        a(f"s_lshl_b32 s{sT0}, s{sQ}, 11")
        a(f"s_add_u32 s{sM0}, s{sM0}, s{sT0}")
        a(f"s_lshl_b32 s{sFR}, s{sW}, 13")
        a(f"s_add_u32 s{sFR}, s{sFR}, {WS_FR}")
        a(f"s_lshl_b32 s{sT0}, s{sW}, 1")
        a(f"v_lshrrev_b32 v{t2}, 1, v{vG16}")
        a(f"v_add_u32 v{t2}, s{sT0}, v{t2}")
        for nt in range(3):
            if nt == 0:
                a(f"v_mov_b32 v{t0}, v{vL15}")
            else:
                a(f"v_add_u32 v{t0}, {16*nt}, v{vL15}")
            if nt == 2:
                a(f"v_min_u32 v{t0}, 39, v{t0}")
            a(f"v_xor_b32 v{t1}, v{t0}, v{vG16}")
            a(f"v_and_b32 v{t1}, 15, v{t1}")
            a(f"v_lshlrev_b32 v{t1}, 4, v{t1}")
            a(f"v_lshl_add_u32 v{t1}, v{t0}, 8, v{t1}")
            a(f"v_add_u32 v{vNB+nt}, {NT}, v{t1}")
            a(f"v_xor_b32 v{t1}, v{t0}, v{t2}")
            a(f"v_and_b32 v{t1}, 15, v{t1}")
            a(f"v_lshlrev_b32 v{t1}, 4, v{t1}")
            a(f"v_lshl_add_u32 v{t1}, v{vNH}, 3, v{t1}")
            a(f"v_lshl_add_u32 v{t1}, v{t0}, 8, v{t1}")
            a(f"v_add_u32 v{vOW+nt}, {NT}, v{t1}")
            a(f"v_cmp_le_u32 vcc, 20, v{t0}")
            a(f"v_lshlrev_b32 v{t1}, 4, v{t0}")
            a(f"v_lshl_add_u32 v{t1}, v{vG16}, 9, v{t1}")
            a(f"v_add_u32 v{t3}, {ST + R*2048 - 320}, v{t1}")
            a(f"v_add_u32 v{t1}, {ST}, v{t1}")
            a(f"v_cndmask_b32 v{vAG+nt}, v{t1}, v{t3}, vcc")

    a("s_waitcnt vmcnt(0) lgkmcnt(0)")
    a(f"s_add_u32 s{sTAG}, s{sTAG}, 1")
    a("s_barrier")
    stamp(a, 10)
    b = Block(a)
    cl = common_loads()

    def p_rd(s):
        b(f"ds_read_b128 {vr(TMP+4*s,4)}, v{AF+s}")
        for jj in range(2):
            b(f"ds_read_b64_tr_b16 {vr(WF+4*s+2*jj,2)}, v{PA} offset:{s*4096+jj*1024}")
    for s in range(4):
        p_rd(s)
    for z in range(8):
        b(f"{MF} {vr(T[0],16)}, {vr(WF+4*z,4)}, {vr(TMP+4*z,4)}, {'0' if z == 0 else vr(T[0],16)}")
        if z < 4:
            p_rd(z + 4)
        if z >= 3:
            for t in cl[z - 3]:
                b(t)
    a("s_barrier")
    for t in cl[5]:
        a(t)
    a("s_nop 3")
    for i in range(8):
        a(f"v_mul_f32 v{T[0]+2*i}, s{sC}, v{T[0]+2*i}")
        a(f"v_mul_f32 v{T[0]+2*i+1}, s{sC}, v{T[0]+2*i+1}")
        a(f"v_cvt_pk_bf16_f32 v{MS+i}, v{T[0]+2*i}, v{T[0]+2*i+1}")
    a(f"ds_write_b128 v{PA+1}, {vr(MS,4)} offset:{SCR}")
    a(f"ds_write_b128 v{PA+2}, {vr(MS+4,4)} offset:{SCR}")
    a("s_waitcnt lgkmcnt(0)")
    a("s_barrier")
    a(f"ds_read_b128 {vr(MS,4)}, v{PA+3} offset:{SCR}")
    a(f"ds_read_b128 {vr(MS+4,4)}, v{PA+3} offset:{SCR+1024}")
    a("s_waitcnt lgkmcnt(1)")
    a(f"buffer_store_dwordx4 {vr(MS,4)}, v{vXV}, s[{RP}:{RP+3}], s{sSP} offen {SC}")
    a("s_waitcnt lgkmcnt(0)")
    a(f"buffer_store_dwordx4 {vr(MS+4,4)}, v{vXV+1}, s[{RP}:{RP+3}], s{sSP} offen {SC}")
    stamp(a, 7)
    a("s_waitcnt vmcnt(2)")

    a.label("L_b1")
    a("s_barrier")
    stamp(a, 1)

    def poll_cells():
        a(f"buffer_load_dwordx4 {vr(EN,4)}, v{vL16}, s[{RWS}:{RWS+3}], s{sCE} offen {SC}")
        a(f"buffer_load_dword v{E3}, v{vL4}, s[{RWS}:{RWS+3}], s{sCE} offen offset:1024 {SC}")
    a.c("---- Q = c * x_nodes @ W2, W3")
    b = Block(a)

    def q_rd(s):
        b(f"ds_read_b128 {vr(TMP+4*s,4)}, v{AF+8+s}")
        for jj in range(2):
            b(f"ds_read_b64_tr_b16 {vr(WF+4*s+2*jj,2)}, v{vQB} offset:{32768+s*4096+jj*1024}")
    for s in range(4):
        q_rd(s)
    poll_cells()
    a(f"v_add_u32 v{t3}, {W3L}, v{vQB}")
    for z in range(4):
        b(f"{MF} {vr(T[0],16)}, {vr(TMP+4*z,4)}, {vr(WF+4*z,4)}, {'0' if z == 0 else vr(T[0],16)}")
        q_rd(z + 4)
    for jj in range(2):
        b(f"ds_read_b64_tr_b16 {vr(W3+2*jj,2)}, v{t3} offset:{jj*1024}")
    a.c("---- publish flag (roles 1, 2): every wave's stores are drained before the barrier")
    a("s_waitcnt vmcnt(2) lgkmcnt(0)")
    b.pend = []
    a("s_barrier")
    a(f"s_cmp_eq_u32 s{sROLE}, 0")
    a("s_cbranch_scc1 L_noflag")
    a(f"s_cmp_eq_u32 s{sW}, 7")
    a("s_cbranch_scc0 L_noflag")
    a(f"s_sub_u32 s{sT0}, s2, {G1}")
    a(f"s_lshl_b32 s{sT0}, s{sT0}, {FSH}")
    a(f"s_add_u32 s{sT0}, s{sT0}, {WS_FLAGS}")
    a(f"v_mov_b32 v{t1}, s{sTAG}")
    a("s_mov_b64 exec, 1")
    a(f"buffer_store_dword v{t1}, v{vL}, s[{RWS}:{RWS+3}], s{sT0} offen {SC}")
    a("s_mov_b64 exec, -1")
    a("s_waitcnt vmcnt(1)")
    a("s_branch L_poll1")
    a.label("L_noflag")
    a("s_waitcnt vmcnt(0)")
    a.label("L_poll1")
    stamp(a, 2)
    for z in range(4, 8):
        a(f"{MF} {vr(T[0],16)}, {vr(TMP+4*z,4)}, {vr(WF+4*z,4)}, {vr(T[0],16)}")
    a(f"s_mov_b32 s{sSP}, {SPIN}")
    a.label("L_poll")
    a(f"v_cmp_ne_u32 vcc, s{sTAG}, v{E3}")
    a(f"v_cmp_ne_u32 s[{sT1}:{sT1+1}], s{sTAG}, v{EN+3}")
    a(f"s_and_b64 vcc, vcc, s[{sM3}:{sM3+1}]")
    a(f"s_or_b64 s[{sEX}:{sEX+1}], vcc, s[{sT1}:{sT1+1}]")
    a("s_cbranch_scc1 L_repoll")
    stamp(a, 3)
    a(f"v_cndmask_b32 v{E3}, v{E3}, -1, s[{sM3}:{sM3+1}]")
    a(f"v_cmp_eq_u32 vcc, {OVF_MARK}, v{EN}")
    a(f"v_cmp_eq_u32 s[{sT1}:{sT1+1}], {OVF_MARK}, v{E3}")
    a(f"s_or_b64 s[{sEX}:{sEX+1}], vcc, s[{sT1}:{sT1+1}]")
    a("s_cbranch_scc1 L_markov")

    a.label("L_count")
    sh = [AF + i for i in range(4)]
    run = [AF + 4 + i for i in range(5)]
    inc = [AF + 9 + i for i in range(4)]
    for j in range(4):
        a(f"v_lshlrev_b32 v{sh[j]}, 4, v{ENT[j]}")
        a(f"v_not_b32 v{inc[j]}, v{ENT[j]}")
        a(f"v_lshrrev_b32 v{inc[j]}, 31, v{inc[j]}")
        a(f"v_lshlrev_b32 v{inc[j]}, v{sh[j]}, v{inc[j]}")
    a(f"v_add_u32 v{run[2]}, v{inc[0]}, v{inc[1]}")
    a(f"v_add_u32 v{run[3]}, v{run[2]}, v{inc[2]}")
    a(f"v_add_u32 v{run[4]}, v{run[3]}, v{inc[3]}")
    a(f"v_mov_b32 v{t2}, {CNT}")
    a(f"s_mov_b32 s{sRC}, 0")
    a(f"v_add_u32_dpp v{t1}, v{run[4]}, v{run[4]} row_shr:1 row_mask:0xf bank_mask:0xf bound_ctrl:0")
    for j, k in enumerate((2, 4, 8)):
        a(f"v_ashrrev_i32 v{REL+j}, 31, v{ENT[j]}")
        a(f"v_add_u32_dpp v{t1}, v{t1}, v{t1} row_shr:{k} row_mask:0xf bank_mask:0xf bound_ctrl:0")
    a(f"v_ashrrev_i32 v{REL+3}, 31, v{ENT[3]}")
    a(f"v_add_u32_dpp v{t1}, v{t1}, v{t1} row_bcast:15 row_mask:0xa bank_mask:0xf")
    a(f"v_add_u32_dpp v{t1}, v{t1}, v{t1} row_bcast:31 row_mask:0xc bank_mask:0xf")
    a("s_mov_b32 exec_lo, 0")
    a("s_brev_b32 exec_hi, 1")
    a(f"ds_add_rtn_u32 v{t3}, v{t2}, v{t1}")
    a("s_mov_b64 exec, -1")
    a(f"v_sub_u32 v{run[0]}, v{t1}, v{run[4]}")
    a(f"v_add_u32 v{run[1]}, v{run[0]}, v{inc[0]}")
    a(f"v_add_u32 v{run[2]}, v{run[0]}, v{run[2]}")
    a(f"v_add_u32 v{run[3]}, v{run[0]}, v{run[3]}")
    a("s_waitcnt lgkmcnt(0)")
    a(f"v_readlane_b32 s{sT0}, v{t3}, 63")
    for j in range(4):
        a(f"v_add_u32 v{run[j]}, s{sT0}, v{run[j]}")
    for j in range(4):
        a(f"v_bfe_u32 v{run[j]}, v{run[j]}, v{sh[j]}, 16")
        a(f"v_or_b32 v{REL+j}, v{REL+j}, v{run[j]}")

    a.label("L_round")
    a(f"v_mov_b32 v{t6}, {ST}")
    a(f"v_mov_b32 v{t5}, {LB}")
    for j in (0, 1, 3, 2):
        a(f"v_cmp_gt_u32 vcc, s{sCAP}, v{REL+j}")
        a(f"s_and_b64 exec, vcc, vcc")
        a(f"s_cbranch_scc0 L_wskip{j}")
        a(f"v_bfe_u32 v{t0}, v{ENT[j]}, 6, 14")
        a(f"v_lshrrev_b32 v{t1}, 20, v{ENT[j]}")
        a(f"v_add_u32 v{t1}, v{t1}, v{EB + (1 if j == 3 else 0)}")
        a(f"v_and_b32 v{t2}, 1, v{ENT[j]}")
        a(f"v_lshl_add_u32 v{t3}, v{t2}, 9, v{REL+j}")
        a(f"v_lshl_add_u32 v{t3}, v{t3}, 3, v{t5}")
        a(f"v_mad_u32_u24 v{t2}, v{t2}, s{sCAP}, v{REL+j}")
        a(f"v_and_or_b32 v{t7}, v{ENT[j]}, 62, v{t6}")
        a(f"v_lshlrev_b32 v{t4}, 2, v{REL+j}")
        a(f"v_and_b32 v{t4}, 0x30, v{t4}")
        a(f"v_xor_b32 v{t7}, v{t7}, v{t4}")
        a(f"v_lshl_add_u32 v{t7}, v{t2}, 6, v{t7}")
        a(f"ds_write_b64 v{t3}, {vr(t0,2)}")
        a(f"ds_write_b16 v{t7}, v{vK3F}")
        a.label(f"L_wskip{j}")
        a("s_mov_b64 exec, -1")
    a(f"v_mov_b32 v{t4}, {CNT}")
    a(f"s_mov_b32 m0, s{sEM}")
    a("s_waitcnt lgkmcnt(0)")
    a("s_barrier")

    def poll_flags():
        a(f"buffer_load_dword v{vFV}, v{vFL}, s[{RWS}:{RWS+3}], s{sFL} offen {SC}")
    LXV = TMP
    a(f"ds_read_b32 v{t0}, v{vLE} offset:4")
    a(f"ds_read_b32 v{vEI}, v{vLE} offset:{4+1024}")
    for k in range(5):
        a(f"ds_read_b128 {vr(LXV+4*k,4)}, v{vLX} offset:{k*256}")
    a(f"ds_read_b128 {vr(vLI,4)}, v{vLX} offset:{5*256}")
    a(f"ds_read_b128 {vr(AF+12,4)}, v{t4}")
    poll_flags()
    a("s_waitcnt lgkmcnt(8)")
    a(f"v_lshl_or_b32 v{t0}, v{t0}, 5, v{vEC}")
    a(f"buffer_load_dwordx4 v{t0}, s[{REA}:{REA+3}], 0 offen lds")
    stamp(a, 9)
    for j in range(4):
        a(f"v_subrev_u32 v{REL+j}, s{sCAP}, v{REL+j}")
    a("s_waitcnt lgkmcnt(0)")
    a(f"v_lshl_or_b32 v{vEI}, v{vEI}, 5, v{vEC}")
    for k in range(5):
        for q in range(2):
            a(f"v_lshl_or_b32 v{LXV+4*k+2*q}, v{LXV+4*k+2*q}, 8, v{vXC+q}")
    a(f"s_cmp_lg_u32 s{sRC}, 0")
    a("s_cbranch_scc1 L_havetot")
    a(f"v_readfirstlane_b32 s{sNA}, v{AF+12}")
    a(f"s_mov_b32 s{sRC}, 1")
    a(f"s_lshr_b32 s{sNB}, s{sNA}, 16")
    a(f"s_and_b32 s{sNA}, s{sNA}, 0xffff")
    a(f"s_cmp_lg_u32 s{sOVR}, 0")
    a("s_cbranch_scc1 L_havetot")
    for k in range(3):
        a(f"v_readfirstlane_b32 s{sOV+k}, v{AF+13+k}")
    a(f"s_mov_b32 s{sOVR}, 1")
    a(f"s_lshl_b32 s{sM0}, s{sG}, 15")
    a(f"s_lshl_b32 s{sT0}, s{sQ}, 11")
    a(f"s_add_u32 s{sM0}, s{sM0}, s{sT0}")
    a.c("---- P flags (first round only)")
    a(f"s_mov_b32 s{sSP}, {SPIN}")
    a("s_waitcnt vmcnt(1)")
    a.label("L_pollf")
    a(f"v_cmp_ne_u32 vcc, s{sTAG}, v{vFV}")
    a("s_cbranch_vccnz L_repollf")
    a(f"s_mov_b32 s{sRC}, 2")
    a.label("L_havetot")
    a(f"s_mov_b32 m0, s{sM0}")
    a("s_barrier")
    stamp(a, 8)

    def x_dma0(k):
        for q in range(2):
            if k or q:
                a(f"s_add_u32 m0, s{sM0}, {(k&3)*8192+q*1024}")
            a(f"buffer_load_dwordx4 v{LXV+4*k+2*q}, s[{RP}:{RP+3}], 0 offen sc1 lds")
    x_dma0(0)
    x_dma0(1)
    a(f"s_max_i32 s{sT1}, s{sNA}, s{sNB}")
    a(f"s_cmp_eq_u32 s{sG}, 0")
    a(f"s_cselect_b32 s{sT2}, s{sNA}, s{sNB}")
    for r_, d_ in ((sT1, sTMAX), (sT2, sTG)):
        a(f"s_max_i32 s{r_}, s{r_}, 1")
        a(f"s_add_u32 s{r_}, s{r_}, 31")
        a(f"s_lshr_b32 s{r_}, s{r_}, 5")
        a(f"s_min_u32 s{d_}, s{r_}, {R}")
    a(f"s_min_i32 s{sI}, s{sNA}, s{sNB}")
    a(f"s_sub_i32 s{sNA}, s{sNA}, {R*32}")
    a(f"s_sub_i32 s{sNB}, s{sNB}, {R*32}")
    a(f"s_cmp_lg_u32 s{sRC}, 2")
    a("s_cbranch_scc1 L_consts_done")
    a(f"s_mov_b32 s{sRC}, 1")
    for i in range(8):
        a(f"v_pk_mul_f32 {vr(T[0]+2*i,2)}, {vr(T[0]+2*i,2)}, s[{sC}:{sC+1}]")
        a(f"v_cvt_pk_bf16_f32 v{Q+i}, v{T[0]+2*i}, v{T[0]+2*i+1}")
    for i in range(4):
        w = W3 + i
        a(f"v_lshlrev_b32 v{t0}, 16, v{w}")
        a(f"v_and_b32 v{t1}, 0xffff0000, v{w}")
        a(f"v_pk_mul_f32 {vr(t0,2)}, {vr(t0,2)}, s[{sC}:{sC+1}]")
        a(f"v_cvt_pk_bf16_f32 v{w}, v{t0}, v{t1}")
    late_consts()
    a.label("L_consts_done")
    a("s_waitcnt vmcnt(2)")
    a("s_barrier")
    stamp(a, 4)
    stamp(a, 0, it=True)

    def l_reads(t):
        slot = t & 3
        return [f"ds_read_b128 {vr(AF,4)}, v{XA} offset:{slot*8192}",
                f"ds_read_b128 {vr(AF+4,4)}, v{XA+1} offset:{slot*8192}",
                f"ds_read_b128 {vr(AF+8,4)}, v{vSA} offset:{t*2048}",
                f"ds_read_b128 {vr(AF+12,4)}, v{vSA+1} offset:{t*2048}",
                f"ds_read_b128 {vr(AF+16,4)}, v{vEA} offset:{t*1024}"]

    def l_mfmas(Tn):
        Bs = [ID, ID + 4, Q, Q + 4, W3]
        return [f"{MF} {vr(Tn,16)}, {vr(AF+4*k,4)}, {vr(Bs[k],4)}, {'0' if k == 0 else vr(Tn,16)}" for k in range(5)]

    def s_reads(t):
        return [f"ds_read_b64_tr_b16 {vr(SF+4*s+2*jj,2)}, v{vST+jj} offset:{t*2048+s*1024}"
                for s in range(2) for jj in range(2)]

    def v_ops(Tc):
        ops = []
        for q in range(2):
            x = X + 8 * q
            for i in range(8):
                ops.append(f"v_exp_f32 v{x+i}, v{Tc+8*q+i}")
            for i in range(4):
                ops.append(f"v_pk_add_f32 {vr(x+2*i,2)}, {vr(x+2*i,2)}, 1.0 op_sel_hi:[1,0]")
            for i in range(8):
                ops.append(f"v_rcp_f32 v{x+i}, v{x+i}")
            for i in range(4):
                ops.append(f"v_pk_mul_f32 {vr(x+2*i,2)}, {vr(x+2*i,2)}, {vr(Tc+8*q+2*i,2)}")
            for k in range(4):
                ops.append(f"v_cvt_pk_bf16_f32 v{MS+4*q+k}, v{x+2*k}, v{x+2*k+1}")
        return ops

    def agg(s):
        return f"{MF} {vr(G,16)}, {vr(MS+4*s,4)}, {vr(SF+4*s,4)}, {vr(G,16)}"

    def fr_ld(f):
        if f < 4:
            return [f"buffer_load_dwordx4 {vr(WF+4*f,4)}, v{vL16}, s[{RWS}:{RWS+3}], s{sFR} offen offset:{f*1024} sc1"]
        return [f"buffer_load_dwordx4 {vr(WF+4*f,4)}, v{vQA}, s[{RWS}:{RWS+3}], s{sFR} offen offset:{(f-4)*1024} sc1"]

    def n_rd(j, nt):
        return [f"v_xor_b32 v{t0+nt}, {j*64}, v{vNB+nt}", f"ds_read_b128 {vr(NF+4*nt,4)}, v{t0+nt}"]

    def u_mf(j, nt):
        return f"{MF16} {vr(U+4*nt,4)}, {vr(WF+4*j,4)}, {vr(NF+4*nt,4)}, {'0' if j == 0 else vr(U+4*nt,4)}"

    a.c("---- chain(0)")
    b = Block(a)
    for r_ in l_reads(0):
        b(r_)
    for r_ in s_reads(0):
        b(r_)
    a(f"v_add_u32 v{vQA}, 4096, v{vL16}")
    a(f"s_sub_u32 s{sTMAX}, s{sTMAX}, s{sTG}")
    a(f"s_cmp_eq_u32 s{sG}, 1")
    a("s_cselect_b64 vcc, -1, 0")
    mf0 = l_mfmas(T[0])
    b(mf0[0])
    x_dma0(2)
    for m_ in mf0[1:]:
        b(m_)
    a("s_waitcnt vmcnt(2) lgkmcnt(0)")
    b.pend = []
    a("s_barrier")
    for r_ in l_reads(1):
        a(r_)

    def e_jit(tile, lbl):
        a(f"s_cmp_eq_u32 s{sQ}, {tile & 3}")
        a(f"s_cbranch_scc0 {lbl}")
        a(f"s_add_u32 m0, s{sEM}, {(tile >> 2) * 4096}")
        a(f"buffer_load_dwordx4 v{vEI}, s[{REA}:{REA+3}], 0 offen lds")
        a.label(lbl)
    for i in range(4):
        a(f"v_mov_b32 v{CK2+i}, v{LXV+12+2*i}")
    vm_ops = [0, 0, 1, 1, 2, 2]
    U_FIRST = 4
    SLOW_T = 7
    BTAIL = 48 if "btail" in Opt.exp else None
    for t in range(R - 1):
        a(f"s_cmp_le_u32 s{sTG}, {t+1}")
        a(f"s_cbranch_scc1 L_exit{t&1}{'s' if t <= SLOW_T else ''}")
        idx = [i for i, o in enumerate(vm_ops) if o == t + 2]
        vmw = f"vmcnt({len(vm_ops) - 1 - max(idx)})" if idx else ""
        a("s_waitcnt lgkmcnt(0)")
        a(f"s_cbranch_vccnz L_nba{t}")
        if vmw:
            a(f"s_waitcnt {vmw}")
        a("s_barrier")
        a.label(f"L_nba{t}")
        if t < 9:
            stamp(a, t + 1, it=True)
        mf = l_mfmas(T[(t + 1) & 1])
        vo = v_ops(T[t & 1])
        ev = {}

        def at(p, t_):
            ev.setdefault(p, []).append(t_)
        do_x = t + 5 < R
        e_blk = (t + 5) // 4 if (t + 5) % 4 == 0 and do_x else None
        for k, p in enumerate([0, 3, 12, 15, 24]):
            at(p, mf[k])
        at(30, agg(0))
        j = t - U_FIRST
        if 0 <= j <= 3:
            for nt in range(3):
                at(40 + nt, u_mf(j, nt))
        bbar = [f"s_cbranch_vccz L_nbb{t}"] + ([f"s_waitcnt {vmw}"] if vmw else []) + ["s_barrier", f"L_nbb{t}:"]
        if BTAIL:
            bbar.insert(1, "s_setprio 1")
            for t_ in bbar:
                at(BTAIL, t_)
        for p, t_ in enumerate(vo):
            for t2_ in ev.get(p, []):
                a(t2_)
            a(t_)
        if do_x:
            for q in range(2):
                a(f"v_lshl_or_b32 v{vLI+2*q}, v{vLI+2*q}, 8, v{vXC+q}")
        if e_blk is not None:
            a(f"v_lshl_or_b32 v{vEI}, v{vEI}, 5, v{vEC}")
        if -1 <= j <= 2:
            for nt in range(3):
                a(n_rd(j + 1, nt)[0])
        a(agg(1))
        if BTAIL:
            a("s_setprio 0")
        else:
            for t_ in bbar:
                a(t_)
        if t + 2 < R:
            for t_ in l_reads(t + 2):
                a(t_)
        for t_ in s_reads(t + 1):
            a(t_)
        if -1 <= j <= 2:
            for nt in range(3):
                a(n_rd(j + 1, nt)[1])
        if t == 0:
            for k in (3, 4):
                if k == 4:
                    e_jit(4, "L_noe_p")
                for q in range(2):
                    a(f"s_add_u32 m0, s{sM0}, {(k&3)*8192+q*1024}")
                    a(f"buffer_load_dwordx4 v{CK2+2*(k-3)+q}, s[{RP}:{RP+3}], 0 offen sc1 lds")
                    vm_ops.append(k)
        if do_x:
            e_jit(t + 5, f"L_noe{t}")
        if t <= SLOW_T:
            for t_ in fr_ld(t):
                a(t_)
            vm_ops.append(-1)
        if do_x:
            for q in range(2):
                a(f"s_add_u32 m0, s{sM0}, {((t+5)&3)*8192+q*1024}")
                a(f"buffer_load_dwordx4 v{vLI+2*q}, s[{RP}:{RP+3}], 0 offen sc1 lds")
                vm_ops.append(t + 5)
        if t + 6 < R:
            a(f"ds_read_b128 {vr(vLI,4)}, v{vLX} offset:{(t+6)*256}")
        if (t + 6) % 4 == 0 and t + 6 < R:
            a(f"ds_read_b32 v{vEI}, v{vLE} offset:{4+((t+6)//4)*1024}")
    a(f"s_branch L_exit{(R-1)&1}")

    for u in (0, 1):
        a.label(f"L_exit{u}")
        vo = v_ops(T[u])
        for p, t_ in enumerate(vo):
            if p == 30:
                a("s_waitcnt lgkmcnt(0)")
                a(agg(0))
            a(t_)
        a(agg(1))
        if u == 0:
            a("s_branch L_extra")

    a.label("L_extra")
    if "nobar" in Opt.exp:
        a(f"s_mov_b32 s{sTMAX}, 0")
    a(f"s_cmp_eq_u32 s{sTMAX}, 0")
    a("s_cbranch_scc1 L_rdone")
    a("s_barrier")
    a(f"s_sub_u32 s{sTMAX}, s{sTMAX}, 1")
    a("s_branch L_extra")
    a.label("L_rdone")
    stamp(a, 5)
    stamp(a, 10, it=True)
    a(f"s_or_b32 s{sT0}, s{sOV}, s{sOV+1}")
    a(f"s_or_b32 s{sT0}, s{sT0}, s{sOV+2}")
    a(f"s_max_i32 s{sT1}, s{sNA}, s{sNB}")
    a(f"s_max_i32 s{sT1}, s{sT1}, 0")
    a(f"s_or_b32 s{sT0}, s{sT0}, s{sT1}")
    a("s_cbranch_scc1 L_more")

    a.c("---- epilogue: agg exchange through dead one-hot tiles 0..3 (a barrier first when a group has fewer than 6 tiles)")
    a(f"s_cmp_le_i32 s{sI}, {5*32}")
    a("s_cbranch_scc1 L_agbar")
    a.label("L_ag")
    a(f"s_mov_b32 s{sT1}, {f32(-0.6931471805599453)}")
    a(f"s_mul_i32 s{sT0}, s{sG}, {R*2048}")
    a(f"s_lshl_b32 s{sT2}, s{sQ}, 11")
    a(f"s_add_u32 s{sT0}, s{sT0}, s{sT2}")
    a(f"s_add_u32 s{sT0}, s{sT0}, {ST}")
    a(f"v_add_u32 v{t1}, s{sT0}, v{vL16}")
    for i in range(8):
        a(f"v_mul_f32 v{G+2*i}, s{sT1}, v{G+2*i}")
        a(f"v_mul_f32 v{G+2*i+1}, s{sT1}, v{G+2*i+1}")
        a(f"v_cvt_pk_bf16_f32 v{MS+i}, v{G+2*i}, v{G+2*i+1}")
    a(f"ds_write_b128 v{t1}, {vr(MS,4)}")
    a(f"ds_write_b128 v{t1}, {vr(MS+4,4)} offset:1024")
    a(f"s_lshl_b32 s{sT0}, s{sW}, 10")
    a(f"s_add_u32 s{sT0}, s{sT0}, {NT}")
    a(f"v_add_u32 v{t0}, s{sT0}, v{vL16}")
    a("s_waitcnt vmcnt(0) lgkmcnt(0)")
    a("s_barrier")
    b = Block(a)
    BF = T[0]
    for j in range(4):
        for nt in range(3):
            b(f"ds_read_b128 {vr(BF+(3*j+nt)*4,4)}, v{vAG+nt} offset:{j*2048}")
    for j in range(4):
        for nt in range(3):
            b(f"{MF16} {vr(U+4*nt,4)}, {vr(WF+16+4*j,4)}, {vr(BF+(3*j+nt)*4,4)}, {vr(U+4*nt,4)}")
    a("s_cmp_eq_u32 s2, 0")
    a("s_cbranch_scc0 L_nononce")
    a(f"v_mov_b32 v{t3}, 0")
    a(f"v_mov_b32 v{t4}, s{sTAG}")
    a(f"buffer_store_dword v{t4}, v{t3}, s[{RWS}:{RWS+3}], 0 offen")
    a.label("L_nononce")
    a("s_nop 3")
    Y = AF
    for i in range(12):
        a(f"v_mul_f32 v{Y+i}, s{sC}, v{U+i}")
    for i in range(12):
        a(f"v_exp_f32 v{Y+i}, v{Y+i}")
    for i in range(6):
        a(f"v_pk_add_f32 {vr(Y+2*i,2)}, {vr(Y+2*i,2)}, 1.0 op_sel_hi:[1,0]")
    for i in range(12):
        a(f"v_rcp_f32 v{Y+i}, v{Y+i}")
    for i in range(6):
        a(f"v_pk_mul_f32 {vr(Y+2*i,2)}, {vr(Y+2*i,2)}, {vr(U+2*i,2)}")
    for i in range(6):
        a(f"v_cvt_pk_bf16_f32 v{MS+i}, v{Y+2*i}, v{Y+2*i+1}")
    for nt in range(3):
        a(f"ds_write_b64 v{vOW+nt}, {vr(MS+2*nt,2)}")
    a("s_waitcnt lgkmcnt(0)")
    a("s_barrier")
    a(f"ds_read_b128 {vr(T[0],4)}, v{t0}")
    a(f"s_cmp_lt_u32 s{sW}, 2")
    a("s_cbranch_scc0 L_st1")
    a(f"ds_read_b128 {vr(T[0]+4,4)}, v{t0} offset:8192")
    a("s_waitcnt lgkmcnt(0)")
    a(f"buffer_store_dwordx4 {vr(T[0]+4,4)}, v{vNO+1}, s[{ROUT}:{ROUT+3}], s{sB8} offen")
    a.label("L_st1")
    a("s_waitcnt lgkmcnt(0)")
    a(f"buffer_store_dwordx4 {vr(T[0],4)}, v{vNO}, s[{ROUT}:{ROUT+3}], s{sB8} offen")
    sp = [x for x in Opt.exp if x.startswith("spin")]
    if sp:
        _, i0, i1, mul = sp[0].split("_")
        a("s_waitcnt vmcnt(0)")
        stamp(a, 6)
        a("s_waitcnt lgkmcnt(0)")
        a(f"s_sub_u32 s{sT0}, s{sST+2*int(i1)}, s{sST+2*int(i0)}")
        a(f"s_mul_i32 s{sT0}, s{sT0}, {mul}")
        a(f"s_min_u32 s{sT0}, s{sT0}, 20000")
        a.label("L_spin")
        a(f"s_memrealtime s[{sT1}:{sT1+1}]")
        a("s_waitcnt lgkmcnt(0)")
        a(f"s_sub_u32 s{sT1}, s{sT1}, s{sST+12}")
        a(f"s_cmp_lt_u32 s{sT1}, s{sT0}")
        a("s_cbranch_scc1 L_spin")
        a("s_endpgm")
    if Opt.stamps:
        a("s_waitcnt vmcnt(0)")
        stamp(a, 6)
        a("s_waitcnt lgkmcnt(0)")
        a(f"s_lshl_b32 s{sT0}, s2, 3")
        a(f"s_add_u32 s{sT0}, s{sT0}, s{sW}")
        a(f"s_lshl_b32 s{sT0}, s{sT0}, 6")
        a(f"s_add_u32 s{sT0}, s{sT0}, {WS_STAMP}")
        a(f"v_mov_b32 v{t0}, 0")
        for k in range(11):
            a(f"v_mov_b32 v{AF+k}, s{sST+2*k}")
        a(f"v_mov_b32 v{AF+11}, s{sTG}")
        for k in range(3):
            a(f"buffer_store_dwordx4 {vr(AF+4*k,4)}, v{t0}, s[{RWS}:{RWS+3}], s{sT0} offen offset:{16*k}")
    a.label("L_end")
    a("s_endpgm")

    a.label("L_role02")
    a(f"s_cmp_eq_u32 s{sROLE}, 0")
    a("s_cbranch_scc0 L_role2")
    a("s_waitcnt vmcnt(0)")
    a("s_branch L_b1")

    a.label("L_role2")
    a(f"s_cmp_lt_u32 s{sSP}, 4")
    a(f"s_cselect_b32 s{sT0}, 3, 2")
    a(f"s_cselect_b32 s{sT1}, 1, 2")
    a(f"s_lshl_b32 s{sT1}, s{sT1}, 10")
    a(f"v_lshlrev_b32 v{t0}, s{sT0}, v{vNH}")
    a(f"v_lshl_add_u32 v{t0}, v{vH}, 4, v{t0}")
    a(f"v_add_u32 v{t0}, v{t0}, v{vR4}")
    a(f"s_lshl_b32 s{sT0}, s{sW}, 1")
    a(f"v_lshrrev_b32 v{t1}, 1, v{vC4}")
    a(f"v_add_u32 v{t1}, s{sT0}, v{t1}")
    a(f"v_xor_b32 v{t1}, v{t1}, v{t6}")
    a(f"v_lshlrev_b32 v{t1}, 4, v{t1}")
    a(f"v_lshl_add_u32 v{t1}, v{t7}, 3, v{t1}")
    a(f"v_lshl_add_u32 v{t3}, v{t0}, 8, v{t1}")
    a(f"v_add_u32 v{t4}, s{sT1}, v{t3}")
    a(f"s_lshl_b32 s{sT0}, s{sW}, 13")
    a(f"s_lshl_b32 s{sT1}, s{sSP}, 10")
    a(f"s_add_u32 s{sT0}, s{sT0}, s{sT1}")
    a(f"s_add_u32 s{sT0}, s{sT0}, {WS_FR}")
    a("s_waitcnt vmcnt(6) lgkmcnt(0)")
    a(f"s_add_u32 s{sTAG}, s{sTAG}, 1")
    a("s_barrier")
    stamp(a, 10)
    a(f"s_cmp_gt_u32 s{sSP}, 7")
    a("s_cbranch_scc1 L_r3")
    a(f"ds_read_b64_tr_b16 {vr(WF,2)}, v{t3}")
    a(f"ds_read_b64_tr_b16 {vr(WF+2,2)}, v{t4}")
    a("s_waitcnt lgkmcnt(0)")
    a(f"buffer_store_dwordx4 {vr(WF,4)}, v{vL16}, s[{RWS}:{RWS+3}], s{sT0} offen {SC}")
    a.label("L_r3")
    if "delay" in Opt.exp:
        a("s_sleep 40")
    stamp(a, 7)
    a("s_waitcnt vmcnt(0)")
    a("s_branch L_b1")

    a.c("---- slow paths")
    a.label("L_repoll")
    a(f"s_lshr_b64 s[{sEX}:{sEX+1}], s[{sT1}:{sT1+1}], 4")
    a(f"s_or_b64 s[{sT1}:{sT1+1}], s[{sT1}:{sT1+1}], s[{sEX}:{sEX+1}]")
    a(f"s_lshr_b64 s[{sEX}:{sEX+1}], s[{sT1}:{sT1+1}], 2")
    a(f"s_or_b64 s[{sT1}:{sT1+1}], s[{sT1}:{sT1+1}], s[{sEX}:{sEX+1}]")
    a(f"s_lshr_b64 s[{sEX}:{sEX+1}], s[{sT1}:{sT1+1}], 1")
    a(f"s_or_b64 s[{sT1}:{sT1+1}], s[{sT1}:{sT1+1}], s[{sEX}:{sEX+1}]")
    for k in range(2):
        a(f"s_and_b32 s{sT1+k}, s{sT1+k}, 0x01010101")
        a(f"s_mul_i32 s{sT1+k}, s{sT1+k}, 255")
    a("s_sleep 2")
    a(f"s_and_b64 exec, s[{sT1}:{sT1+1}], s[{sT1}:{sT1+1}]")
    a("s_cbranch_scc0 L_rp1")
    a(f"buffer_load_dwordx4 {vr(EN,4)}, v{vL16}, s[{RWS}:{RWS+3}], s{sCE} offen {SC}")
    a.label("L_rp1")
    a("s_cmp_lg_u32 vcc_lo, 0")
    a("s_cselect_b32 exec_lo, -1, 0")
    a("s_cmp_lg_u32 vcc_hi, 0")
    a("s_cselect_b32 exec_hi, -1, 0")
    a("s_cbranch_execz L_rp2")
    a(f"buffer_load_dword v{E3}, v{vL4}, s[{RWS}:{RWS+3}], s{sCE} offen offset:1024 {SC}")
    a.label("L_rp2")
    a("s_mov_b64 exec, -1")
    a(f"s_sub_u32 s{sSP}, s{sSP}, 1")
    a("s_waitcnt vmcnt(0)")
    a("s_cbranch_scc0 L_poll")
    a("s_endpgm")
    a.label("L_repollf")
    a("s_mov_b64 exec, vcc")
    poll_flags()
    a("s_mov_b64 exec, -1")
    a(f"s_sub_u32 s{sSP}, s{sSP}, 1")
    a("s_waitcnt vmcnt(0)")
    a("s_cbranch_scc0 L_pollf")
    a("s_endpgm")

    for u in (0, 1):
        a.label(f"L_exit{u}s")
        for f in range(8):
            for t_ in fr_ld(f):
                a(t_)
        a("s_waitcnt vmcnt(0) lgkmcnt(0)")
        for j in range(4):
            for nt in range(3):
                for t_ in n_rd(j, nt):
                    a(t_)
            a("s_waitcnt lgkmcnt(0)")
            for nt in range(3):
                a(u_mf(j, nt))
        a(f"s_branch L_exit{u}")

    a.label("L_agbar")
    a("s_waitcnt lgkmcnt(0)")
    a("s_barrier")
    a("s_branch L_ag")

    a.label("L_bin_ovf")
    a("s_waitcnt lgkmcnt(0)")
    a("s_barrier")
    a(f"ds_read_b32 v{vU}, v{vA} offset:{CN}")
    a(f"v_mov_b32 v{vK}, 0")
    a(f"ds_write_b32 v{PA+1}, v{vK}")
    a(f"v_cmp_gt_u32 vcc, 256, v0")
    a("s_mov_b64 exec, vcc")
    a("s_waitcnt lgkmcnt(0)")
    a(f"v_cmp_lt_u32 vcc, {CAPK}, v{vU}")
    a(f"v_lshlrev_b32 v{vU}, 5, v0")
    for i in range(4):
        a(f"v_mov_b32 v{vF+i}, {OVF_MARK}")
    a("s_mov_b64 exec, vcc")
    for k in range(3):
        a(f"ds_write_b128 v{vU}, {vr(vF,4)} offset:{PL+k*8192}")
        a(f"ds_write_b128 v{vU}, {vr(vF,4)} offset:{PL+k*8192+16}")
    a("s_mov_b64 exec, -1")
    a("s_waitcnt lgkmcnt(0)")
    a("s_barrier")
    a("s_branch L_bin_out")

    a.label("L_markov")
    for (msk, ch) in (("vcc", CK), (f"s[{sT1}:{sT1+1}]", CK + 1)):
        a(f"v_lshrrev_b32 v{t2}, 5, v{ch}")
        a(f"v_lshlrev_b32 v{t2}, 2, v{t2}")
        a(f"v_add_u32 v{t2}, {OVF}, v{t2}")
        a(f"v_lshlrev_b32_e64 v{t3}, v{ch}, 1")
        a(f"s_mov_b64 exec, {msk}")
        a(f"ds_or_b32 v{t2}, v{t3}")
        a("s_mov_b64 exec, -1")
    a("s_branch L_count")

    a.label("L_more")
    a(f"s_cmp_eq_u32 s{sT1}, 0")
    a("s_cbranch_scc1 L_rescan")
    a("s_waitcnt vmcnt(0) lgkmcnt(0)")
    a("s_barrier")
    lds_init(False)
    a("s_waitcnt lgkmcnt(0)")
    a("s_barrier")
    a("s_branch L_round")

    a.label("L_rescan")
    for k in range(3):
        a(f"s_ff1_i32_b32 s{sT0}, s{sOV+k}")
        a(f"s_cmp_lt_i32 s{sT0}, 0")
        a(f"s_cbranch_scc1 L_rs{k}")
        a(f"s_bitset0_b32 s{sOV+k}, s{sT0}")
        a(f"s_add_u32 s{sT0}, s{sT0}, {32*k}")
        a("s_branch L_rsgo")
        a.label(f"L_rs{k}")
    a.label("L_rsgo")
    a(f"s_mul_i32 s{sT1}, s{sT0}, {CH}")
    a(f"v_mov_b32 v{EB}, s{sT1}")
    a(f"v_mov_b32 v{EB+1}, s{sT1}")
    a(f"s_lshl_b32 s{sT1}, s{sT1}, 2")
    a("s_waitcnt vmcnt(0) lgkmcnt(0)")
    a(f"buffer_load_dwordx4 {vr(T[0],4)}, v{vT16}, s[{RDST}:{RDST+3}], s{sT1} offen")
    a(f"buffer_load_dwordx4 {vr(T[0]+4,4)}, v{vT16}, s[{RSRC}:{RSRC+3}], s{sT1} offen")
    a("s_barrier")
    lds_init(True)
    a("s_waitcnt vmcnt(0)")
    a(f"v_lshlrev_b32 v{t1}, 22, v0")
    a(f"v_mov_b32 v{t3}, {CH//4}")
    for j in range(4):
        a(f"v_lshrrev_b32 v{t2}, 8, v{T[0]+j}")
        a(f"v_lshl_or_b32 v{t2}, v{T[0]+4+j}, 6, v{t2}")
        a(f"v_add_u32 v{t4}, {j << 20}, v{t1}")
        a(f"v_or_b32 v{t2}, v{t2}, v{t4}")
        a(f"v_and_b32 v{t4}, 255, v{T[0]+j}")
        a(f"v_cmp_eq_u32 vcc, s2, v{t4}")
        a(f"v_cndmask_b32 v{t2}, -1, v{t2}, vcc")
        a(f"v_cmp_gt_u32 vcc, v{t3}, v0")
        a(f"v_cndmask_b32 v{ENT[j]}, -1, v{t2}, vcc")
    a("s_waitcnt lgkmcnt(0)")
    a("s_barrier")
    a("s_branch L_count")
    a.label("L_code_end")
    return V


def build():
    a = Asm()
    hdr = open("cdna_kernels/%s.s.ref" % NAME).read().split("; Override")[0]
    a.raw(hdr.rstrip())
    a.raw(f"; @launch grid=(256,1,1) block=(512,1,1) lds={LDS}")
    a.raw('.amdgcn_target "amdgcn-amd-amdhsa--gfx950"\n.text')
    V = gen_main(a)
    a.raw('.section .rodata,"a"')
    a.raw(f""".p2align 6
.amdhsa_kernel {NAME}_kernel
  .amdhsa_next_free_vgpr 256
  .amdhsa_next_free_sgpr 102
  .amdhsa_accum_offset 256
  .amdhsa_group_segment_fixed_size 0
  .amdhsa_kernarg_size 72
  .amdhsa_user_sgpr_count 2
  .amdhsa_user_sgpr_kernarg_segment_ptr 1
  .amdhsa_system_sgpr_workgroup_id_x 1
.end_amdhsa_kernel""")
    return a, V


if __name__ == "__main__":
    out = sys.argv[1]
    Opt.exp = set(sys.argv[2:])
    Opt.stamps = "stamps" in Opt.exp
    Opt.cycst = "cyc" in Opt.exp
    a, V = build()
    open(out, "w").write(a.text())
    print("vgprs used:", V.next)
    if "log" in Opt.exp:
        for (ln, pad, t) in a.log:
            print("nop", pad, "before line", ln, t)
```

```python
import struct
import sys
from asmlib import Asm, Ins, Regs, vr, sr

NAME = "standalone__mpnn_edge_mlp__graph"
N, E = 10000, 160000
G1, CH, CAPK = 80, 2000, 24
NPW = 157
R = 13
EA = 65536
XT = EA
W3L = EA + 22528
ST = EA + 2 * R * 1024
LB = ST + 2 * R * 2048
NT = LB + 8192
MISC = NT - 32
LDS = 163840
assert NT + 10240 == LDS
CNT = MISC
OVF = MISC + 4
ARR = MISC + 16
WS_FLAGS = 4096
FSH = 7
WS_CELLS = 32768
WS_FR = 3 << 20
WS_P = (3 << 20) + 65536
WS_SIZE = 8 << 20
WS_STAMP = 7 << 20
OVF_MARK = -2
LOG2E = 1.4426950408889634
SPIN = 200000


def f32(x):
    return "0x%08x" % struct.unpack("<I", struct.pack("<f", x))[0]


class Opt:
    stamps = False
    cycst = False
    exp = set()


def opt(prefix, default):
    return int(next((x[len(prefix):] for x in Opt.exp if x.startswith(prefix) and x[len(prefix):].isdigit()), default))


RX, REA, RSRC, RDST, RWM, RWU, ROUT, RWS, RP = 4, 8, 12, 16, 20, 24, 28, 32, 36
sROLE = 3
sW, sG, sARR, sQ, sT1, sT2, sT0, sREM = 40, 41, 42, 43, 44, 45, 46, 47
sEX = 48
sCAP, sRC = 50, 51
sNA, sNB, sTG, sTMAX, sI = 52, 53, 54, 55, 56
sM0 = 57
sOV = 58
sTAG = 61
sC = 62
sOVR, sSP, sEM, sFR = 64, 65, 66, 67
sM3 = 68
sB8 = 70
sPC = 72
sCE, sFL = 74, 75
sEXM, sQM = 76, 78
sST = 80


def stamp(a, k, it=False):
    if ("itst" in Opt.exp) != it:
        return
    if Opt.stamps:
        a(f"{'s_memtime' if Opt.cycst else 's_memrealtime'} s[{sST+2*k}:{sST+2*k+1}]")


class Block:
    def __init__(self, a):
        self.a = a
        self.pend = []

    def __call__(self, t):
        if t.endswith(":"):
            self.a(t)
            return
        ins = Ins(t)
        use = ins.s | ins.d
        last = -1
        for i, dset in enumerate(self.pend):
            if dset & use:
                last = i
        if last >= 0:
            n = len(self.pend) - 1 - last
            self.a(f"s_waitcnt lgkmcnt({n})")
            self.pend = self.pend[last + 1:]
        if ins.is_ds:
            if len(self.pend) >= 15:
                self.a("s_waitcnt lgkmcnt(14)")
                self.pend = self.pend[-14:]
            self.pend.append(ins.d)
        self.a(t)


MF = "v_mfma_f32_32x32x16_bf16"
MF16 = "v_mfma_f32_16x16x32_bf16"
SC = "sc1"


def gen_main(a):
    EH = opt("eh", 4)
    TS = opt("ts", 6)
    LE0 = opt("le0", 2)
    LE1 = opt("le1", 3)
    U_FIRST = 4
    SLOW_T = 7

    V = Regs("v", 1, 256)
    vL = V.alloc("L")
    ID = V.alloc("ID", 8, 4)
    W3 = V.alloc("W3", 4)
    Q = V.alloc("Q", 8)
    G = V.alloc("G", 16)
    U = V.alloc("U", 12)
    NF = V.alloc("NF", 12)
    WF = V.alloc("WF", 32)
    T = [V.alloc("T0", 16), V.alloc("T1", 16)]
    X = V.alloc("X", 16)
    AF = V.alloc("AF", 20)
    SF = V.alloc("SF", 8)
    MS = V.alloc("MS", 8)
    vLI = V.alloc("LI", 4)
    vLJ = V.alloc("LJ", 4)
    LXV = V.alloc("LXV", 16)
    EN = V.alloc("EN", 4, 4)
    TT = V.alloc("TT", 8)
    XA = V.alloc("XA", 2)
    vSA = V.alloc("SA", 2)
    vST = V.alloc("ST", 2)
    vXC = V.alloc("XC", 2)
    vNO = V.alloc("NO", 2)
    REL = V.alloc("REL", 4)
    EB = V.alloc("EB", 2)
    vNB = V.alloc("NB", 9)
    vAG, vOW = vNB + 3, vNB + 6
    vEA, vLX, vEC, E3, vL16, vQA, vK3F, vT16 = [V.alloc(n) for n in ("EA", "LX", "EC", "E3", "L16", "QA", "K3F", "T16")]
    PA = NF
    vXV = NF + 8
    vL4, vFL = NF + 10, NF + 11
    vH, vM, vG16, vNH, vR4, vC4, vL15, vWD, vFV, vC1, vC2, vR44 = [U + i for i in range(12)]
    ENT = [EN, EN + 1, EN + 2, E3]
    TMP = T[1]
    assert X == T[1] + 16
    t0, t1, t2, t3, t4, t5, t6, t7 = [TT + i for i in range(8)]

    a.raw(f".globl {NAME}_kernel\n.p2align 8\n.type {NAME}_kernel,@function")
    a.label(f"{NAME}_kernel")
    a(f"s_getpc_b64 s[{sPC}:{sPC+1}]")
    for (r_, off) in ((RX, 0), (RWM, 32), (RDST, 24), (RSRC, 16), (RWS, 64), (RWU, 40), (REA, 8), (ROUT, 48)):
        a(f"s_load_dwordx2 s[{r_}:{r_+1}], s[0:1], {off}")
    a("s_cmp_ge_u32 s2, 256")
    a("s_cbranch_scc1 L_end")
    a.c("pull the code into this XCD's L2")
    a(f"v_lshlrev_b32 v{t0}, 7, v0")
    a(f"v_min_u32 v{t1}, L_code_end-{NAME}_kernel-8, v{t0}")
    a(f"global_load_dword v{vFV}, v{t1}, s[{sPC}:{sPC+1}]")
    stamp(a, 0)
    a(f"v_lshrrev_b32 v{t1}, 6, v0")
    a(f"v_and_b32 v{vL}, 63, v0")
    a(f"v_readfirstlane_b32 s{sW}, v{t1}")
    a(f"v_lshrrev_b32 v{vG16}, 4, v{vL}")
    a(f"v_and_b32 v{vL15}, 15, v{vL}")
    a(f"v_lshlrev_b32 v{vT16}, 4, v0")
    a(f"v_lshlrev_b32 v{vL16}, 4, v{vL}")
    a(f"s_lshr_b32 s{sG}, s{sW}, 2")
    a(f"s_and_b32 s{sQ}, s{sW}, 3")
    a(f"v_lshlrev_b32 v{t1}, 2, v{vG16}")
    a(f"v_xor_b32 v{t1}, v{t1}, v{vL15}")
    a(f"v_lshlrev_b32 v{t1}, 4, v{t1}")
    a(f"v_lshl_add_u32 v{vWD}, v{vG16}, 8, v{t1}")
    a(f"s_lshl_b32 s{sT0}, s{sQ}, 3")
    a(f"v_add_u32 v{t1}, s{sT0}, v{vG16}")
    a(f"v_xor_b32 v{t2}, v{t1}, v{vL15}")
    a(f"v_and_b32 v{t2}, 15, v{t2}")
    a(f"v_lshlrev_b32 v{vXC}, 4, v{t2}")
    a(f"v_lshl_or_b32 v{vXV}, v{t1}, 8, v{vXC}")
    a(f"v_xor_b32 v{vXV+1}, {1024+64}, v{vXV}")
    a(f"s_lshl_b32 s{sM0}, s{sW}, 11")
    for r_, nb in ((RX, N * 256), (RWM, 272 * 256), (RDST, E * 4), (RSRC, E * 4), (RWU, 65536), (RWS, WS_SIZE)):
        a(f"s_mov_b32 s{r_+2}, {nb}")
        a(f"s_mov_b32 s{r_+3}, 0x20000")
    a(f"s_cmp_lt_u32 s2, {G1}")
    a("s_cbranch_scc1 L_bin")
    a(f"s_cmp_lt_u32 s2, {G1+NPW}")
    a("s_cbranch_scc0 L_ld2")
    a.c("---- role 1: x tile and W1")
    a(f"s_sub_u32 s{sT1}, s2, {G1}")
    a(f"s_lshl_b32 s{sT1}, s{sT1}, 1")
    a(f"s_add_u32 s{sT1}, s{sT1}, s{sG}")
    a(f"s_lshl_b32 s{sSP}, s{sT1}, 13")
    a(f"s_add_u32 m0, s{sM0}, {XT}")
    a(f"s_lshl_b32 s{sT0}, s{sW}, 12")
    a(f"s_mov_b32 s{sROLE}, 1")
    a("s_waitcnt lgkmcnt(0)")
    a(f"buffer_load_dwordx4 v{vXV}, s[{RX}:{RX+3}], s{sSP} offen lds")
    a(f"s_add_u32 m0, s{sM0}, {XT+1024}")
    a(f"buffer_load_dwordx4 v{vXV+1}, s[{RX}:{RX+3}], s{sSP} offen lds")
    a(f"s_mov_b32 m0, s{sT0}")
    for k in range(4):
        a(f"buffer_load_dwordx4 v{vWD}, s[{RWM}:{RWM+3}], s{sT0} offen offset:{k*1024} lds")
    a("s_branch L_shadow")

    PL, CN = 0, 24576
    FL = CN + 1024
    vD, vS = WF, WF + 4
    vK, vB = WF + 8, WF + 12
    vA, vT, vU, vOne = WF + 16, WF + 17, WF + 18, WF + 19
    vF = WF + 20
    a.label("L_bin")
    a(f"s_mul_i32 s{sI}, s2, {CH*4}")
    a(f"s_mov_b32 s{sROLE}, 0")
    a(f"s_and_b32 s{sNB}, s2, -8")
    a(f"s_add_u32 s{sNB}, s{sNB}, s{sW}")
    a(f"s_lshl_b32 s{sNB}, s{sNB}, 10")
    a("s_waitcnt lgkmcnt(0)")
    a(f"buffer_load_dwordx4 {vr(vD,4)}, v{vT16}, s[{RDST}:{RDST+3}], s{sI} offen")
    a(f"buffer_load_dwordx4 {vr(vS,4)}, v{vT16}, s[{RSRC}:{RSRC+3}], s{sI} offen")
    a(f"s_load_dword s{sTAG}, s[{RWS}:{RWS+1}], 0")
    a(f"buffer_load_dwordx4 {vr(EN,4)}, v{vL16}, s[{RWM}:{RWM+3}], s{sNB} offen")
    for i in range(4):
        a(f"v_mov_b32 v{vF+i}, -1")
    a(f"v_mov_b32 v{vOne}, 0")
    a(f"v_lshlrev_b32 v{vA}, 2, v0")
    for k in range(3):
        a(f"ds_write_b128 v{vT16}, {vr(vF,4)} offset:{PL+k*8192}")
    a(f"ds_write_b32 v{vA}, v{vOne} offset:{CN}")
    a(f"v_cmp_gt_u32 vcc, {CH//4}, v0")
    a(f"v_lshlrev_b32 v{vU}, 22, v0")
    a(f"v_lshrrev_b32 v{PA}, 3, v0")
    a(f"v_mul_u32_u24 v{PA}, {G1*128}, v{PA}")
    a(f"v_and_b32 v{vK}, 7, v0")
    a(f"v_lshl_add_u32 v{PA}, v{vK}, 4, v{PA}")
    a(f"v_mov_b32 v{PA+1}, {FL}")
    a(f"v_mov_b32 v{vOne}, 1")
    a(f"s_lshl_b32 s{sT0}, s2, 7")
    a(f"s_add_u32 s{sT0}, s{sT0}, {WS_CELLS}")
    a("s_waitcnt lgkmcnt(0)")
    a(f"s_add_u32 s{sTAG}, s{sTAG}, 1")
    a("s_barrier")
    a("s_mov_b64 exec, vcc")
    a("s_waitcnt vmcnt(2)")
    stamp(a, 10)
    for j in range(4):
        a(f"v_and_b32 v{vB+j}, 255, v{vD+j}")
        a(f"v_lshlrev_b32 v{PA+2+j}, 2, v{vB+j}")
    for j in range(4):
        a(f"ds_add_rtn_u32 v{vK+j}, v{PA+2+j}, v{vOne} offset:{CN}")
    a("s_waitcnt vmcnt(1)")
    for j in range(4):
        a(f"v_lshrrev_b32 v{vD+j}, 8, v{vD+j}")
        a(f"v_lshl_or_b32 v{vD+j}, v{vS+j}, 6, v{vD+j}")
        a(f"v_or_b32 v{vD+j}, v{vD+j}, v{vU}")
        if j < 3:
            a(f"v_add_u32 v{vU}, {1 << 20}, v{vU}")
        a(f"v_lshlrev_b32 v{vB+j}, 5, v{vB+j}")
    for j in range(4):
        a(f"s_waitcnt lgkmcnt({3-j})")
        a(f"v_min_u32 v{vS+j}, {CAPK-1}, v{vK+j}")
        a(f"v_lshrrev_b32 v{vT}, 3, v{vS+j}")
        a(f"v_lshl_add_u32 v{vB+j}, v{vT}, 13, v{vB+j}")
        a(f"v_and_b32 v{vT}, 7, v{vS+j}")
        a(f"v_lshl_add_u32 v{vB+j}, v{vT}, 2, v{vB+j}")
    a(f"v_max3_u32 v{vU}, v{vK}, v{vK+1}, v{vK+2}")
    a(f"v_max_u32 v{vU}, v{vU}, v{vK+3}")
    a(f"v_cmp_le_u32 vcc, {CAPK}, v{vU}")
    for j in range(4):
        a(f"ds_write_b32 v{vB+j}, v{vD+j} offset:{PL}")
    a("s_mov_b64 exec, vcc")
    a(f"ds_write_b32 v{PA+1}, v{vOne}")
    a("s_mov_b64 exec, -1")
    vO = [WF, WF + 4, WF + 20, WF + 24]
    a("s_waitcnt lgkmcnt(0)")
    a("s_barrier")
    a.label("L_bin_out")
    a(f"ds_read_b32 v{vU}, v{PA+1}")
    for k in range(4):
        a(f"ds_read2st64_b32 {vr(vO[k],2)}, v{vA} offset0:{k*8} offset1:{k*8+32}")
        a(f"ds_read_b32 v{vO[k]+2}, v{vA} offset:{k*2048+16384}")
    for k in range(4):
        a(f"v_mov_b32 v{vO[k]+3}, s{sTAG}")
    a("s_waitcnt lgkmcnt(8)")
    a(f"v_readfirstlane_b32 s{sT1}, v{vU}")
    a(f"s_cmp_lg_u32 s{sT1}, 0")
    a("s_cbranch_scc1 L_bin_ovf")
    for k in range(4):
        a(f"s_waitcnt lgkmcnt({6-2*k})")
        a(f"buffer_store_dwordx4 {vr(vO[k],4)}, v{PA}, s[{RWS}:{RWS+3}], s{sT0} offen {SC}")
        if k < 3:
            a(f"s_add_u32 s{sT0}, s{sT0}, {64*G1*128}")
    stamp(a, 7)
    a("s_branch L_shadow0")

    a.c("---- role 2: k-step i of w_upd (workgroups past the 8th read out of range)")
    a.label("L_ld2")
    a(f"s_sub_u32 s{sSP}, s2, {G1+NPW}")
    a(f"s_lshl_b32 s{sT0}, s{sW}, 10")
    a(f"s_lshl_b32 s{sT1}, s{sSP}, 13")
    a(f"s_add_u32 s{sT1}, s{sT1}, s{sT0}")
    a(f"s_mov_b32 m0, s{sT0}")
    a(f"s_mov_b32 s{sROLE}, 2")
    a("s_waitcnt lgkmcnt(0)")
    a(f"buffer_load_dwordx4 v{vWD}, s[{RWU}:{RWU+3}], s{sT1} offen lds")

    a.label("L_shadow")
    a(f"s_load_dword s{sTAG}, s[{RWS}:{RWS+1}], 0")
    a.label("L_shadow0")

    def lds_init(with_misc):
        z = X
        for i in range(4):
            a(f"v_mov_b32 v{z+i}, 0")
        a(f"v_add_u32 v{z+8}, {ST}, v{vT16}")
        a(f"v_cmp_gt_u32 vcc, 510, v0")
        a(f"v_mov_b32 v{z+4}, 0x7fffff")
        for k in range(6):
            a(f"ds_write_b128 v{z+8}, {vr(z,4)} offset:{k*8192}")
        a(f"s_cmp_eq_u32 s{sG}, 0")
        a(f"s_cbranch_scc0 L_li{lds_init.n}")
        a(f"ds_write_b128 v{z+8}, {vr(z,4)} offset:{6*8192}")
        a.label(f"L_li{lds_init.n}")
        lds_init.n += 1
        if with_misc:
            a(f"v_cndmask_b32 v{z+4}, 0, v{z+4}, vcc")
        for i in range(1, 4):
            a(f"v_mov_b32 v{z+4+i}, v{z+4}")
        if not with_misc:
            a("s_mov_b64 exec, vcc")
        a(f"ds_write_b128 v{z+8}, {vr(z+4,4)} offset:{LB-ST}")
        if not with_misc:
            a("s_mov_b64 exec, -1")
    lds_init.n = 0
    lds_init(True)
    for r_, nb in ((REA, E * 32), (ROUT, N * 256), (RP, N * 256)):
        a(f"s_mov_b32 s{r_+2}, {nb}")
        a(f"s_mov_b32 s{r_+3}, 0x20000")
    a(f"s_add_u32 s{RP}, s{RWS}, {WS_P}")
    a(f"s_addc_u32 s{RP+1}, s{RWS+1}, 0")
    a(f"s_mov_b32 s{sC}, {f32(-LOG2E)}")
    a(f"s_mov_b32 s{sC+1}, {f32(-LOG2E)}")
    a(f"s_lshl_b32 s{sB8}, s2, 8")
    a(f"v_lshrrev_b32 v{vH}, 5, v{vL}")
    a(f"v_and_b32 v{vM}, 31, v{vL}")
    a(f"v_and_b32 v{vNH}, 1, v{vG16}")
    a(f"v_bfe_u32 v{vR4}, v{vL}, 2, 2")
    a(f"v_and_b32 v{vC1}, 1, v{vL}")
    a(f"v_bfe_u32 v{vC2}, v{vL}, 1, 1")
    a(f"v_and_b32 v{vR44}, 12, v{vL}")
    a(f"v_lshlrev_b32 v{vL4}, 2, v{vL}")
    a(f"v_xor_b32 v{vXC+1}, 64, v{vXC}")
    a(f"s_lshl_b32 s{sT0}, s{sW}, 2")
    a(f"v_add_u32 v{t0}, s{sT0}, v{vG16}")
    a(f"v_xor_b32 v{t1}, v{t0}, v{vL15}")
    a(f"v_and_b32 v{t1}, 15, v{t1}")
    a(f"v_lshlrev_b32 v{t1}, 4, v{t1}")
    a(f"v_lshl_or_b32 v{vNO}, v{t0}, 17, v{t1}")
    a(f"v_add_u32 v{vNO+1}, {(64 - 39) << 16}, v{vNO}")
    a(f"s_cmp_ge_u32 s{sW}, 5")
    a(f"s_cselect_b32 s{sT0}, {39 << 16}, 0")
    a(f"v_subrev_u32 v{vNO}, s{sT0}, v{vNO}")
    a(f"s_mul_i32 s{sCE}, s2, {G1}")
    a(f"s_mul_i32 s{sT1}, s{sW}, 10")
    a(f"s_add_u32 s{sCE}, s{sCE}, s{sT1}")
    a(f"s_lshl_b32 s{sCE}, s{sCE}, 7")
    a(f"s_add_u32 s{sCE}, s{sCE}, {WS_CELLS}")
    a(f"v_lshrrev_b32 v{t0}, 3, v{vL}")
    a(f"v_add_u32 v{t0}, s{sT1}, v{t0}")
    a(f"s_add_u32 s{sT1}, s{sT1}, 8")
    a(f"v_add_u32 v{t1}, s{sT1}, v{vH}")
    a(f"v_mul_u32_u24 v{EB}, {CH}, v{t0}")
    a(f"v_mul_u32_u24 v{EB+1}, {CH}, v{t1}")
    a(f"s_mov_b32 s{sM3}, 0x88888888")
    a(f"s_mov_b32 s{sM3+1}, 0x88888888")
    a(f"s_mov_b32 s{sEXM}, 0x000f000f")
    a(f"s_mov_b32 s{sEXM+1}, 0x000f000f")
    a(f"s_mov_b32 s{sQM}, 0xcccccccc")
    a(f"s_mov_b32 s{sQM+1}, 0xcccccccc")
    a(f"s_lshl_b32 s{sT2}, s{sQ}, 6")
    a(f"s_mul_i32 s{sEM}, s{sG}, {R*1024}")
    a(f"s_add_u32 s{sEM}, s{sEM}, s{sT2}")
    a(f"s_add_u32 s{sEM}, s{sEM}, {EA}")
    a(f"s_lshl_b32 s{sT1}, s{sG}, 12")
    a(f"s_add_u32 s{sT1}, s{sT1}, {LB}")
    a(f"s_add_u32 s{sT2}, s{sT2}, s{sT1}")
    a(f"v_lshl_add_u32 v{vLX}, v{vG16}, 4, s{sT2}")
    a(f"v_xor_b32 v{vEC}, v{vC1}, v{vNH}")
    a(f"v_lshlrev_b32 v{vEC}, 4, v{vEC}")
    a(f"s_mov_b32 s{sCAP}, {R*32}")
    a(f"s_mov_b32 s{sOVR}, 0")
    a(f"s_mov_b32 s{sARR}, s{sROLE}")
    a(f"v_mov_b32 v{vK3F}, 0x3f80")
    a(f"s_cmp_eq_u32 s{sROLE}, 1")
    a("s_cbranch_scc0 L_cl")
    a(f"s_lshl_b32 s{sT0}, s{sQ}, 2")
    a(f"v_lshl_add_u32 v{t0}, v{vC1}, 1, v{vNH}")
    a(f"v_add_u32 v{t0}, s{sT0}, v{t0}")
    a(f"v_xor_b32 v{t0}, v{t0}, v{vR44}")
    a(f"v_lshlrev_b32 v{t0}, 4, v{t0}")
    a(f"v_lshl_add_u32 v{t0}, v{vC2}, 3, v{t0}")
    a(f"v_lshl_add_u32 v{t4}, v{vH}, 3, v{vR4}")
    a(f"v_lshl_add_u32 v{PA}, v{t4}, 8, v{t0}")
    a(f"v_xor_b32 v{t1}, v{vL15}, v{vH}")
    a(f"v_lshlrev_b32 v{t1}, 4, v{t1}")
    a(f"v_lshl_add_u32 v{t1}, v{vM}, 8, v{t1}")
    a(f"s_lshl_b32 s{sT1}, s{sG}, 13")
    a(f"s_add_u32 s{sT2}, s{sT1}, {XT}")
    a(f"v_add_u32 v{AF}, s{sT2}, v{t1}")
    for s in range(1, 8):
        a(f"v_xor_b32 v{AF+s}, {s*32}, v{AF}")
    a(f"v_lshl_add_u32 v{t1}, v{vH}, 1, s{sT0}")
    a(f"v_xor_b32 v{t1}, v{t1}, v{vL15}")
    a(f"v_lshlrev_b32 v{t1}, 4, v{t1}")
    a(f"v_lshl_add_u32 v{t1}, v{vM}, 8, v{t1}")
    a(f"v_add_u32 v{PA+1}, s{sT1}, v{t1}")
    a(f"v_xor_b32 v{PA+2}, 16, v{PA+1}")
    a(f"v_add_u32 v{PA+3}, s{sM0}, v{vL16}")
    a.label("L_cl")
    a.c("---- node rows, W2, W3: 6 loads per wave ")
    a(f"s_lshl_b32 s{sNB}, s{sW}, 10")
    a(f"s_add_u32 m0, s{sNB}, {NT}")
    a(f"s_lshl_b32 s{sNA}, s{sW}, 12")
    a(f"buffer_load_dwordx4 v{vNO}, s[{RX}:{RX+3}], s{sB8} offen lds")
    a(f"s_cmp_lt_u32 s{sW}, 2")
    a("s_cbranch_scc0 L_ld_w3")
    a(f"s_add_u32 m0, s{sNB}, {NT+8192}")
    a(f"buffer_load_dwordx4 v{vNO+1}, s[{RX}:{RX+3}], s{sB8} offen lds")
    a("s_branch L_ld_w2")
    a.label("L_ld_w3")
    a(f"s_min_u32 s{sNB}, s{sNB}, {5*1024}")
    a(f"s_add_u32 m0, s{sNB}, {W3L-2048}")
    a(f"s_add_u32 s{sNB}, s{sNB}, {65536-2048}")
    a(f"buffer_load_dwordx4 v{vWD}, s[{RWM}:{RWM+3}], s{sNB} offen lds")
    a.label("L_ld_w2")
    a(f"s_add_u32 s{sNA}, s{sNA}, 32768")
    a(f"s_mov_b32 m0, s{sNA}")
    for k in range(4):
        a(f"buffer_load_dwordx4 v{vWD}, s[{RWM}:{RWM+3}], s{sNA} offen offset:{k*1024} lds")
    a(f"s_cmp_eq_u32 s{sROLE}, 1")
    a("s_cbranch_scc0 L_role02")

    def arrive(n):
        a("s_waitcnt vmcnt(0)")
        a(f"s_cmp_eq_u32 s{sARR}, 0")
        a(f"s_cbranch_scc1 L_arr{n}")
        a(f"s_mov_b32 s{sARR}, 0")
        a("s_mov_b64 exec, 1")
        a(f"v_mov_b32 v{t4}, {ARR}")
        a(f"v_mov_b32 v{t0}, 1")
        a(f"ds_add_rtn_u32 v{t0}, v{t4}, v{t0}")
        a(f"s_sub_u32 s{sNB}, s2, {G1}")
        a(f"s_lshl_b32 s{sNB}, s{sNB}, {FSH}")
        a(f"s_add_u32 s{sNB}, s{sNB}, {WS_FLAGS}")
        a(f"v_mov_b32 v{t1}, s{sTAG}")
        a("s_waitcnt lgkmcnt(0)")
        a(f"v_readfirstlane_b32 s{sNA}, v{t0}")
        a(f"s_cmp_eq_u32 s{sNA}, 7")
        a(f"s_cbranch_scc0 L_arrx{n}")
        a(f"buffer_store_dword v{t1}, v{vL}, s[{RWS}:{RWS+3}], s{sNB} offen {SC}")
        a.label(f"L_arrx{n}")
        a("s_mov_b64 exec, -1")
        stamp(a, 2)
        a.label(f"L_arr{n}")

    def poll_cells():
        a(f"buffer_load_dwordx4 {vr(EN,4)}, v{vL16}, s[{RWS}:{RWS+3}], s{sCE} offen {SC}")
        a(f"buffer_load_dword v{E3}, v{vL4}, s[{RWS}:{RWS+3}], s{sCE} offen offset:1024 {SC}")

    a("s_waitcnt vmcnt(6) lgkmcnt(0)")
    a(f"s_add_u32 s{sTAG}, s{sTAG}, 1")
    a("s_barrier")
    stamp(a, 10)
    b = Block(a)

    def p_rd(s):
        b(f"ds_read_b128 {vr(TMP+4*s,4)}, v{AF+s}")
        for jj in range(2):
            b(f"ds_read_b64_tr_b16 {vr(WF+4*s+2*jj,2)}, v{PA} offset:{s*4096+jj*1024}")
    for s in range(4):
        p_rd(s)
    for z in range(8):
        b(f"{MF} {vr(T[0],16)}, {vr(WF+4*z,4)}, {vr(TMP+4*z,4)}, {'0' if z == 0 else vr(T[0],16)}")
        if z < 4:
            p_rd(z + 4)
    a("s_barrier")
    for i in range(8):
        a(f"v_mul_f32 v{T[0]+2*i}, s{sC}, v{T[0]+2*i}")
        a(f"v_mul_f32 v{T[0]+2*i+1}, s{sC}, v{T[0]+2*i+1}")
        a(f"v_cvt_pk_bf16_f32 v{MS+i}, v{T[0]+2*i}, v{T[0]+2*i+1}")
    a(f"ds_write_b128 v{PA+1}, {vr(MS,4)}")
    a(f"ds_write_b128 v{PA+2}, {vr(MS+4,4)}")
    a("s_waitcnt lgkmcnt(0)")
    a("s_barrier")
    a(f"ds_read_b128 {vr(MS,4)}, v{PA+3}")
    a(f"ds_read_b128 {vr(MS+4,4)}, v{PA+3} offset:1024")
    poll_cells()
    a("s_waitcnt lgkmcnt(1)")
    a(f"buffer_store_dwordx4 {vr(MS,4)}, v{vXV}, s[{RP}:{RP+3}], s{sSP} offen {SC}")
    a("s_waitcnt lgkmcnt(0)")
    a(f"buffer_store_dwordx4 {vr(MS+4,4)}, v{vXV+1}, s[{RP}:{RP+3}], s{sSP} offen {SC}")
    stamp(a, 7)

    a("s_waitcnt vmcnt(2)")
    if "arrb" in Opt.exp:
        a(f"s_cmp_eq_u32 s{sG}, 0")
        a("s_cbranch_scc1 L_common")
        arrive(3)
    a.label("L_common")
    a(f"s_mov_b32 s{sSP}, {SPIN}")
    stamp(a, 1)
    a.label("L_poll")
    a(f"v_cmp_ne_u32 vcc, s{sTAG}, v{E3}")
    a(f"v_cmp_ne_u32 s[{sT1}:{sT1+1}], s{sTAG}, v{EN+3}")
    a(f"s_and_b64 vcc, vcc, s[{sM3}:{sM3+1}]")
    a(f"s_or_b64 s[{sEX}:{sEX+1}], vcc, s[{sT1}:{sT1+1}]")
    a("s_cbranch_scc1 L_repoll")
    stamp(a, 3)
    a(f"v_cndmask_b32 v{E3}, v{E3}, -1, s[{sM3}:{sM3+1}]")
    a(f"v_min_i32 v{t0}, v{EN}, v{E3}")
    a(f"v_cmp_eq_u32 vcc, {OVF_MARK}, v{t0}")
    a("s_cbranch_vccnz L_markov")

    a.label("L_count")
    sh = [SF + i for i in range(4)]
    run = [AF + i for i in range(5)]
    for j in range(4):
        a(f"v_lshlrev_b32 v{sh[j]}, 4, v{ENT[j]}")
        a(f"v_ashrrev_i32 v{REL+j}, 31, v{ENT[j]}")
        a(f"v_add_u32 v{t0}, 1, v{REL+j}")
        if j == 0:
            a(f"v_lshlrev_b32 v{run[1]}, v{sh[j]}, v{t0}")
        else:
            a(f"v_lshl_add_u32 v{run[j+1]}, v{t0}, v{sh[j]}, v{run[j]}")
    a(f"v_mov_b32 v{t2}, {CNT}")
    a(f"s_mov_b32 s{sRC}, 0")
    a(f"v_add_u32_dpp v{t1}, v{run[4]}, v{run[4]} row_shr:1 row_mask:0xf bank_mask:0xf bound_ctrl:0")
    for k in (2, 4, 8):
        a(f"v_add_u32_dpp v{t1}, v{t1}, v{t1} row_shr:{k} row_mask:0xf bank_mask:0xf bound_ctrl:0")
    a(f"v_add_u32_dpp v{t1}, v{t1}, v{t1} row_bcast:15 row_mask:0xa bank_mask:0xf")
    a(f"v_add_u32_dpp v{t1}, v{t1}, v{t1} row_bcast:31 row_mask:0xc bank_mask:0xf")
    a("s_mov_b32 exec_lo, 0")
    a("s_brev_b32 exec_hi, 1")
    a(f"ds_add_rtn_u32 v{t3}, v{t2}, v{t1}")
    a("s_mov_b64 exec, -1")
    a(f"v_sub_u32 v{run[0]}, v{t1}, v{run[4]}")
    for j in range(1, 4):
        a(f"v_add_u32 v{run[j]}, v{run[0]}, v{run[j]}")
    a("s_waitcnt lgkmcnt(0)")
    a(f"v_readlane_b32 s{sT0}, v{t3}, 63")
    for j in range(4):
        a(f"v_add_u32 v{run[j]}, s{sT0}, v{run[j]}")
    for j in range(4):
        a(f"v_bfe_u32 v{run[j]}, v{run[j]}, v{sh[j]}, 16")
        a(f"v_or_b32 v{REL+j}, v{REL+j}, v{run[j]}")

    a.label("L_round")
    a(f"v_mov_b32 v{t6}, {ST}")
    a(f"v_mov_b32 v{t5}, {LB}")
    for j in (0, 1, 3, 2):
        a(f"v_cmp_gt_u32 vcc, s{sCAP}, v{REL+j}")
        a(f"s_and_b64 exec, vcc, vcc")
        a(f"s_cbranch_scc0 L_wskip{j}")
        a(f"v_bfe_u32 v{t0}, v{ENT[j]}, 6, 14")
        a(f"v_lshrrev_b32 v{t1}, 20, v{ENT[j]}")
        a(f"v_add_u32 v{t1}, v{t1}, v{EB + (1 if j == 3 else 0)}")
        a(f"v_and_b32 v{t2}, 1, v{ENT[j]}")
        a(f"v_lshl_add_u32 v{t3}, v{t2}, 9, v{REL+j}")
        a(f"v_lshl_add_u32 v{t3}, v{t3}, 3, v{t5}")
        a(f"v_mad_u32_u24 v{t2}, v{t2}, s{sCAP}, v{REL+j}")
        a(f"v_and_or_b32 v{t7}, v{ENT[j]}, 62, v{t6}")
        a(f"v_lshlrev_b32 v{t4}, 2, v{REL+j}")
        a(f"v_and_b32 v{t4}, 0x30, v{t4}")
        a(f"v_xor_b32 v{t7}, v{t7}, v{t4}")
        a(f"v_lshl_add_u32 v{t7}, v{t2}, 6, v{t7}")
        a(f"ds_write_b64 v{t3}, {vr(t0,2)}")
        a(f"ds_write_b16 v{t7}, v{vK3F}")
        a.label(f"L_wskip{j}")
        a("s_mov_b64 exec, -1")

    arrive(0)
    a(f"v_mov_b32 v{t4}, {CNT}")
    a("s_waitcnt lgkmcnt(0)")
    a("s_barrier")

    def xe_addr(r):
        return [f"v_lshl_or_b32 v{r}, v{r}, 8, v{vXC}",
                f"v_lshl_or_b32 v{r+2}, v{r+2}, 8, v{vXC+1}",
                f"v_cndmask_b32 v{r+1}, v{r+1}, v{r+3}, s[{sQM}:{sQM+1}]",
                f"v_lshl_or_b32 v{r+1}, v{r+1}, 5, v{vEC}"]

    def e_dma(tile, r):
        a(f"s_add_u32 m0, s{sEM}, {tile*1024}")
        a(f"s_mov_b64 exec, s[{sEXM}:{sEXM+1}]")
        a(f"buffer_load_dwordx4 v{r+1}, s[{REA}:{REA+3}], 0 offen lds")
        a("s_mov_b64 exec, -1")

    def poll_flags():
        a(f"buffer_load_dword v{vFV}, v{vFL}, s[{RWS}:{RWS+3}], s{sFL} offen {SC}")
    NPRE = 4
    for k in range(NPRE):
        a(f"ds_read_b128 {vr(LXV+4*k,4)}, v{vLX} offset:{k*256}")
    a(f"ds_read_b128 {vr(MS,4)}, v{t4}")
    for k in range(NPRE):
        a(f"s_waitcnt lgkmcnt({NPRE-k})")
        for t_ in xe_addr(LXV + 4 * k)[2:]:
            a(t_)
        if k < EH:
            e_dma(k, LXV + 4 * k)
    stamp(a, 9)
    for k in range(3):
        for t_ in xe_addr(LXV + 4 * k)[:2]:
            a(t_)
    for j in range(4):
        a(f"v_subrev_u32 v{REL+j}, s{sCAP}, v{REL+j}")
    a("s_waitcnt lgkmcnt(0)")
    a(f"s_cmp_lg_u32 s{sRC}, 0")
    a("s_cbranch_scc1 L_havetot")
    a(f"v_readfirstlane_b32 s{sNA}, v{MS}")
    a(f"s_mov_b32 s{sRC}, 1")
    a(f"s_lshr_b32 s{sNB}, s{sNA}, 16")
    a(f"s_and_b32 s{sNA}, s{sNA}, 0xffff")
    a(f"s_cmp_lg_u32 s{sOVR}, 0")
    a("s_cbranch_scc1 L_havetot")
    for k in range(3):
        a(f"v_readfirstlane_b32 s{sOV+k}, v{MS+1+k}")
    a.c("---- first round only: Q = x_nodes @ W2, W3, epilogue addresses, P flags")
    a(f"s_lshl_b32 s{sT0}, s{sQ}, 2")
    a(f"v_lshl_add_u32 v{vC4}, v{vNH}, 1, v{vC2}")
    a(f"v_add_u32 v{t0}, s{sT0}, v{vC4}")
    a(f"v_xor_b32 v{t0}, v{t0}, v{vR44}")
    a(f"v_lshlrev_b32 v{t0}, 4, v{t0}")
    a(f"v_lshl_add_u32 v{t0}, v{vC1}, 3, v{t0}")
    a(f"v_lshl_add_u32 v{t4}, v{vH}, 3, v{vR4}")
    a(f"v_lshl_add_u32 v{t3}, v{t4}, 8, v{t0}")
    a(f"v_add_u32 v{t6}, {W3L}, v{t3}")
    b = Block(a)

    def w2_rd(s):
        for jj in range(2):
            b(f"ds_read_b64_tr_b16 {vr(WF+4*s+2*jj,2)}, v{t3} offset:{32768+s*4096+jj*1024}")
    for s in range(4):
        w2_rd(s)
    a(f"v_and_b32 v{t0}, 0x13, v{vM}")
    a(f"v_and_b32 v{t1}, 4, v{vM}")
    a(f"v_lshl_or_b32 v{t0}, v{t1}, 1, v{t0}")
    a(f"v_bfe_u32 v{t1}, v{vM}, 3, 1")
    a(f"v_lshl_or_b32 v{t0}, v{t1}, 2, v{t0}")
    a(f"v_min_u32 v{t0}, 19, v{t0}")
    a(f"s_mul_i32 s{sT1}, s{sG}, 20")
    a(f"v_add_u32 v{t0}, s{sT1}, v{t0}")
    a(f"v_xor_b32 v{t1}, v{t0}, v{vH}")
    a(f"v_and_b32 v{t1}, 15, v{t1}")
    a(f"v_lshlrev_b32 v{t1}, 4, v{t1}")
    a(f"v_lshl_add_u32 v{t1}, v{t0}, 8, v{t1}")
    a(f"v_add_u32 v{AF}, {NT}, v{t1}")
    for s in range(1, 8):
        a(f"v_xor_b32 v{AF+s}, {s*32}, v{AF}")
    for s in range(4):
        b(f"ds_read_b128 {vr(TMP+4*s,4)}, v{AF+s}")
    fill = [f"s_mul_i32 s{sFL}, s{sW}, {22 << FSH}",
            f"s_add_u32 s{sFL}, s{sFL}, {WS_FLAGS}",
            f"v_min_u32 v{vFL}, 21, v{vL}",
            f"v_lshlrev_b32 v{vFL}, {FSH}, v{vFL}",
            f"s_lshl_b32 s{sFR}, s{sW}, 13",
            f"s_add_u32 s{sFR}, s{sFR}, {WS_FR}",
            f"s_lshl_b32 s{sT0}, s{sW}, 1",
            f"v_add_u32 v{t2}, s{sT0}, v{vH}",
            f"v_xor_b32 v{t4}, v{t2}, v{vG16}",
            f"v_lshlrev_b32 v{t4}, 4, v{t4}",
            f"v_lshl_or_b32 v{t4}, v{vNH}, 3, v{t4}"]
    for nt in range(3):
        if nt == 0:
            fill.append(f"v_mov_b32 v{t0}, v{vL15}")
        else:
            fill.append(f"v_add_u32 v{t0}, {16*nt}, v{vL15}")
        if nt == 2:
            fill.append(f"v_min_u32 v{t0}, 39, v{t0}")
        fill += [f"v_xor_b32 v{t1}, v{t0}, v{vG16}",
                 f"v_and_b32 v{t1}, 15, v{t1}",
                 f"v_lshlrev_b32 v{t1}, 4, v{t1}",
                 f"v_lshl_add_u32 v{t1}, v{t0}, 8, v{t1}",
                 f"v_add_u32 v{vNB+nt}, {NT}, v{t1}",
                 f"v_xor_b32 v{vOW+nt}, v{t4}, v{vNB+nt}",
                 f"v_lshlrev_b32 v{t1}, 4, v{t0}",
                 f"v_lshl_add_u32 v{t1}, v{vG16}, 9, v{t1}"]
        if nt == 0:
            fill.append(f"v_add_u32 v{vAG+nt}, {ST}, v{t1}")
        elif nt == 2:
            fill.append(f"v_add_u32 v{vAG+nt}, {ST + R*2048 - 320}, v{t1}")
        else:
            fill += [f"v_cmp_le_u32 vcc, 20, v{t0}",
                     f"v_add_u32 v{t5}, {ST + R*2048 - 320}, v{t1}",
                     f"v_add_u32 v{t1}, {ST}, v{t1}",
                     f"v_cndmask_b32 v{vAG+nt}, v{t1}, v{t5}, vcc"]
    fill += [f"s_lshl_b32 s{sM0}, s{sG}, 15", f"s_lshl_b32 s{sT0}, s{sQ}, 11", f"s_add_u32 s{sM0}, s{sM0}, s{sT0}"]
    per = (len(fill) + 7) // 8
    for z in range(8):
        b(f"{MF} {vr(T[0],16)}, {vr(TMP+4*z,4)}, {vr(WF+4*z,4)}, {'0' if z == 0 else vr(T[0],16)}")
        if z < 4:
            b(f"ds_read_b128 {vr(TMP+4*(z+4),4)}, v{AF+z+4}")
            w2_rd(z + 4)
        if z == 4:
            for jj in range(2):
                b(f"ds_read_b64_tr_b16 {vr(W3+2*jj,2)}, v{t6} offset:{jj*1024}")
        if z == opt("pf", 2):
            poll_flags()
        for t_ in fill[z * per:(z + 1) * per]:
            b(t_)
    a(f"s_mov_b32 s{sSP}, {SPIN}")
    a("s_waitcnt vmcnt(0) lgkmcnt(0)")
    a.label("L_pollf")
    a(f"v_cmp_ne_u32 vcc, s{sTAG}, v{vFV}")
    a("s_cbranch_vccnz L_repollf")
    a.label("L_havetot")
    a(f"s_mov_b32 m0, s{sM0}")
    a("s_barrier")
    stamp(a, 8)

    vm_ops = []

    def x_dma0(k):
        if k >= EH:
            e_dma(k, LXV + 4 * k)
            vm_ops.append(k)
        vm_ops.extend([k, k])
        for q in range(2):
            if k or q or k >= EH:
                a(f"s_add_u32 m0, s{sM0}, {(k&3)*8192+q*1024}")
            a(f"buffer_load_dwordx4 v{LXV+4*k+2*q}, s[{RP}:{RP+3}], 0 offen sc1 lds")
    x_dma0(0)
    a(f"s_max_i32 s{sT1}, s{sNA}, s{sNB}")
    a(f"s_cmp_eq_u32 s{sG}, 0")
    a(f"s_cselect_b32 s{sT2}, s{sNA}, s{sNB}")
    a(f"s_mov_b32 s{sREM}, s{sT2}")
    for r_, d_ in ((sT1, sTMAX), (sT2, sTG)):
        a(f"s_max_i32 s{r_}, s{r_}, 1")
        a(f"s_add_u32 s{r_}, s{r_}, 31")
        a(f"s_lshr_b32 s{r_}, s{r_}, 5")
        a(f"s_min_u32 s{d_}, s{r_}, {R}")
    a(f"s_lshl_b32 s{sT0}, s{sTG}, 5")
    a(f"s_sub_i32 s{sREM}, s{sREM}, s{sT0}")
    a(f"s_min_i32 s{sI}, s{sNA}, s{sNB}")
    a(f"s_sub_i32 s{sNA}, s{sNA}, {R*32}")
    a(f"s_sub_i32 s{sNB}, s{sNB}, {R*32}")
    a(f"s_sub_u32 s{sTMAX}, s{sTMAX}, s{sTG}")
    a(f"s_cmp_lg_u32 s{sOVR}, 0")
    a("s_cbranch_scc1 L_consts_done")
    a(f"s_mov_b32 s{sOVR}, 1")
    a(f"s_lshl_b32 s{sT0}, s{sQ}, 2")
    a(f"v_and_b32 v{t2}, 24, v{vM}")
    a(f"v_lshl_or_b32 v{t0}, v{vC1}, 2, v{t2}")
    a(f"v_bfe_u32 v{t3}, v{vM}, 1, 2")
    a(f"v_or_b32 v{t0}, v{t0}, v{t3}")
    a(f"v_add_u32 v{t1}, s{sT0}, v{vH}")
    a(f"v_xor_b32 v{t1}, v{t1}, v{t0}")
    a(f"v_and_b32 v{t1}, 15, v{t1}")
    a(f"v_lshlrev_b32 v{t1}, 4, v{t1}")
    a(f"v_lshl_add_u32 v{t1}, v{t0}, 8, v{t1}")
    a(f"s_lshl_b32 s{sT1}, s{sG}, 15")
    a(f"v_add_u32 v{XA}, s{sT1}, v{t1}")
    a(f"v_xor_b32 v{XA+1}, 32, v{XA}")
    a(f"v_xor_b32 v{t1}, v{vC2}, v{vH}")
    a(f"v_lshlrev_b32 v{t1}, 4, v{t1}")
    a(f"v_lshl_or_b32 v{t1}, v{vC1}, 5, v{t1}")
    a(f"v_lshl_or_b32 v{t1}, v{t3}, 8, v{t1}")
    a(f"v_lshl_or_b32 v{t1}, v{t2}, 3, v{t1}")
    a(f"s_and_b32 s{sT1}, s{sEM}, -256")
    a(f"v_add_u32 v{vEA}, s{sT1}, v{t1}")
    a(f"s_mul_i32 s{sT1}, s{sG}, {R*2048}")
    a(f"s_add_u32 s{sT1}, s{sT1}, {ST}")
    a(f"v_xor_b32 v{t0}, v{vR4}, v{vH}")
    a(f"v_lshlrev_b32 v{t0}, 4, v{t0}")
    a(f"v_lshl_add_u32 v{t0}, v{vM}, 6, v{t0}")
    a(f"v_add_u32 v{vSA}, s{sT1}, v{t0}")
    a(f"v_xor_b32 v{vSA+1}, 32, v{vSA}")
    a(f"v_xor_b32 v{t0}, v{vC4}, v{vH}")
    a(f"v_lshlrev_b32 v{t0}, 4, v{t0}")
    a(f"v_lshl_add_u32 v{t0}, v{vC1}, 3, v{t0}")
    a(f"v_lshl_add_u32 v{t1}, v{vH}, 2, v{vR4}")
    a(f"v_lshl_add_u32 v{t0}, v{t1}, 6, v{t0}")
    a(f"v_add_u32 v{vST}, s{sT1}, v{t0}")
    a(f"v_xor_b32 v{vST+1}, {32+512}, v{vST}")
    a(f"v_add_u32 v{vQA}, 4096, v{vL16}")
    for i in range(8):
        a(f"v_pk_mul_f32 {vr(T[0]+2*i,2)}, {vr(T[0]+2*i,2)}, s[{sC}:{sC+1}]")
        a(f"v_cvt_pk_bf16_f32 v{Q+i}, v{T[0]+2*i}, v{T[0]+2*i+1}")
    for i in range(4):
        w = W3 + i
        a(f"v_lshlrev_b32 v{t0}, 16, v{w}")
        a(f"v_and_b32 v{t1}, 0xffff0000, v{w}")
        a(f"v_pk_mul_f32 {vr(t0,2)}, {vr(t0,2)}, s[{sC}:{sC+1}]")
        a(f"v_cvt_pk_bf16_f32 v{w}, v{t0}, v{t1}")
    a(f"v_lshrrev_b32 v{t0}, 1, v{vM}")
    a(f"v_lshlrev_b32 v{t1}, 2, v{vH}")
    a(f"v_sub_u32 v{t0}, v{t0}, v{t1}")
    a(f"v_lshlrev_b32 v{t1}, 4, v{vM}")
    a(f"v_lshlrev_b32 v{t1}, v{t1}, v{vK3F}")
    for s in range(2):
        for r_ in range(4):
            a(f"v_cmp_eq_u32 vcc, {8*s+r_}, v{t0}")
            a(f"v_mov_b32 v{G+8*s+2*r_}, 0")
            a(f"v_mov_b32 v{G+8*s+2*r_+1}, 0")
            a(f"v_cndmask_b32 v{ID+4*s+r_}, 0, v{t1}, vcc")
    a.label("L_consts_done")
    if "x1late" not in Opt.exp:
        x_dma0(1)
    a(f"s_cmp_eq_u32 s{sG}, 1")
    a("s_cselect_b64 vcc, -1, 0")
    a(f"s_waitcnt vmcnt({vm_ops.count(1)})")
    a("s_barrier")
    stamp(a, 4)
    stamp(a, 0, it=True)

    def l_reads(t):
        slot = t & 3
        return [f"ds_read_b128 {vr(AF,4)}, v{XA} offset:{slot*8192}",
                f"ds_read_b128 {vr(AF+4,4)}, v{XA+1} offset:{slot*8192}",
                f"ds_read_b128 {vr(AF+8,4)}, v{vSA} offset:{t*2048}",
                f"ds_read_b128 {vr(AF+12,4)}, v{vSA+1} offset:{t*2048}",
                f"ds_read_b128 {vr(AF+16,4)}, v{vEA} offset:{t*1024}"]

    def l_mfmas(Tn):
        Bs = [ID, ID + 4, Q, Q + 4, W3]
        return [f"{MF} {vr(Tn,16)}, {vr(AF+4*k,4)}, {vr(Bs[k],4)}, {'0' if k == 0 else vr(Tn,16)}" for k in range(5)]

    def s_reads(t):
        return [f"ds_read_b64_tr_b16 {vr(SF+4*s+2*jj,2)}, v{vST+jj} offset:{t*2048+s*1024}"
                for s in range(2) for jj in range(2)]

    def v_ops(Tc):
        ops = []
        for q in range(2):
            x = X + 8 * q
            ops += [f"v_exp_f32 v{x+i}, v{Tc+8*q+i}" for i in range(8)]
            ops += [f"v_pk_add_f32 {vr(x+2*i,2)}, {vr(x+2*i,2)}, 1.0 op_sel_hi:[1,0]" for i in range(4)]
            ops += [f"v_rcp_f32 v{x+i}, v{x+i}" for i in range(8)]
            ops += [f"v_pk_mul_f32 {vr(x+2*i,2)}, {vr(x+2*i,2)}, {vr(Tc+8*q+2*i,2)}" for i in range(4)]
            ops += [f"v_cvt_pk_bf16_f32 v{MS+4*q+k}, v{x+2*k}, v{x+2*k+1}" for k in range(4)]
        return ops

    def v_ops_s(Tc):
        ops = [f"v_exp_f32 v{X+i}, v{Tc+i}" for i in range(16)]
        ops += [f"v_add_f32 v{X+i}, 1.0, v{X+i}" for i in range(16)]
        ops += [f"v_rcp_f32 v{X+i}, v{X+i}" for i in range(16)]
        ops += [f"v_pk_mul_f32 {vr(X+2*i,2)}, {vr(X+2*i,2)}, {vr(Tc+2*i,2)}" for i in range(8)]
        ops += [f"v_cvt_pk_bf16_f32 v{MS+k}, v{X+2*k}, v{X+2*k+1}" for k in range(8)]
        return ops

    def agg(s):
        return f"{MF} {vr(G,16)}, {vr(MS+4*s,4)}, {vr(SF+4*s,4)}, {vr(G,16)}"

    def fr_ld(f):
        return f"buffer_load_dwordx4 {vr(WF+4*f,4)}, v{vL16 if f < 4 else vQA}, s[{RWS}:{RWS+3}], s{sFR} offen offset:{(f&3)*1024} sc1"

    def n_rd(j, nt):
        return [f"v_xor_b32 v{t0+nt}, {j*64}, v{vNB+nt}", f"ds_read_b128 {vr(NF+4*nt,4)}, v{t0+nt}"]

    def u_mf(j, nt):
        return f"{MF16} {vr(U+4*nt,4)}, {vr(WF+4*j,4)}, {vr(NF+4*nt,4)}, {'0' if j == 0 else vr(U+4*nt,4)}"

    def u_scale():
        return [f"v_pk_mul_f32 {vr(U+2*i,2)}, {vr(U+2*i,2)}, s[{sC}:{sC+1}]" for i in range(6)]

    def need(t):
        if t < 0:
            return 0
        return t + 1 if t < TS - 1 else t + 2

    XS = []
    nxt = 3
    for t in range(R - 1):
        tgt = min(need(t + (LE0 if t < TS else LE1)), need(t - 1) + 4, R - 1, nxt + 1)
        XS.append(list(range(nxt, tgt + 1)))
        nxt = max(nxt, tgt + 1)
    XS.append([])
    LI = [vLI, vLJ]

    def li_reads(tiles):
        return [f"ds_read_b128 {vr(LI[j_ & 1],4)}, v{vLX} offset:{j_*256}" for j_ in tiles]

    b = Block(a)
    if "c0prio" in Opt.exp:
        a("s_cbranch_vccz L_c0")
        a("s_setprio 1")
        a.label("L_c0")
    for r_ in l_reads(0):
        b(r_)
    m0_ = l_mfmas(T[0])
    if "x1late" in Opt.exp:
        x_dma0(1)
    b(m0_[0])
    b(m0_[1])
    x_dma0(2)
    b(m0_[2])
    b(m0_[3])
    for r_ in s_reads(0):
        b(r_)
    b(m0_[4])
    for t_ in li_reads(XS[0]):
        a(t_)
    if "c0prio" in Opt.exp:
        a("s_setprio 0")
    a("s_nop 7")
    for t in range(R - 1):
        a(f"s_cmp_le_u32 s{sTG}, {t+1}")
        a(f"s_cbranch_scc1 L_exit{t&1}{'s' if t <= SLOW_T else ''}")
        idx = [i for i, o in enumerate(vm_ops) if o == min(need(t), R - 1) or o == ("fr", t + 1 - U_FIRST)]
        vmw = f"vmcnt({len(vm_ops) - 1 - max(idx)})"
        a("s_waitcnt lgkmcnt(0)")
        a(f"s_cbranch_vccnz L_nba{t}")
        a(f"s_waitcnt {vmw}")
        a("s_barrier")
        a.label(f"L_nba{t}")
        if t < 9:
            stamp(a, t + 1, it=True)
        shallow = t < TS
        mf = l_mfmas(T[(t + 1) & 1])
        ev = {}

        def at(p, t_):
            ev.setdefault(p, []).append(t_)
        j = t - U_FIRST
        if shallow:
            vo = v_ops_s(T[t & 1])
            at(62, agg(0))
            upos, spos = 1, 56
        else:
            vo = v_ops(T[t & 1])
            for k, p in enumerate([0, 3, 12, 15, 24]):
                at(p, mf[k])
            at(30, agg(0))
            upos, spos = 40, 52
        if 0 <= j <= 3:
            for nt in range(3):
                at(upos + nt, u_mf(j, nt))
        if j == 3:
            for t_ in u_scale():
                at(spos, t_)
        for p, t_ in enumerate(vo):
            for t2_ in ev.get(p, []):
                a(t2_)
            a(t_)
        for j_ in XS[t]:
            for t_ in xe_addr(LI[j_ & 1])[:(4 if j_ >= EH else 2)]:
                a(t_)
        if -1 <= j <= 2:
            for nt in range(3):
                a(n_rd(j + 1, nt)[0])
        a(agg(1))
        a(f"s_cbranch_vccz L_nbb{t}")
        a(f"s_waitcnt {vmw}")
        a("s_barrier")
        a.label(f"L_nbb{t}")
        vmem = []
        for j_ in XS[t]:
            if j_ >= EH:
                vmem.append([f"s_add_u32 m0, s{sEM}, {j_*1024}", f"s_mov_b64 exec, s[{sEXM}:{sEXM+1}]",
                             f"buffer_load_dwordx4 v{LI[j_&1]+1}, s[{REA}:{REA+3}], 0 offen lds", "s_mov_b64 exec, -1"])
                vm_ops.append(j_)
            for q in range(2):
                vmem.append([f"s_add_u32 m0, s{sM0}, {(j_&3)*8192+q*1024}",
                             f"buffer_load_dwordx4 v{LI[j_&1]+2*q}, s[{RP}:{RP+3}], 0 offen sc1 lds"])
                vm_ops.append(j_)
        if t <= SLOW_T:
            vmem.append([fr_ld(t)])
            vm_ops.append(("fr", t))
        nrd = [n_rd(j + 1, nt)[1] for nt in range(3)] if -1 <= j <= 2 else []
        if shallow:
            b = Block(a)
            for t_ in l_reads(t + 1):
                b(t_)
            rd2 = l_reads(t + 2)
            if vmem:
                for t_ in vmem.pop(0):
                    b(t_)
            for k in range(5):
                b(mf[k])
                if t == TS - 1:
                    b(rd2[k])
                if k == 3:
                    for t_ in s_reads(t + 1):
                        b(t_)
                elif vmem:
                    for t_ in vmem.pop(0):
                        b(t_)
        else:
            if t + 2 < R:
                for t_ in l_reads(t + 2):
                    a(t_)
            for t_ in s_reads(t + 1):
                a(t_)
        for t_ in nrd:
            a(t_)
        for grp in vmem:
            for t_ in grp:
                a(t_)
        for t_ in li_reads(XS[t + 1]):
            a(t_)
        if shallow:
            a("s_nop 7")
    a(f"s_branch L_exit{(R-1)&1}")

    for u in (0, 1):
        a.label(f"L_exit{u}")
        vo = v_ops(T[u])
        for p, t_ in enumerate(vo):
            if p == 28:
                a("s_waitcnt lgkmcnt(0)")
                a(f"s_cmp_le_i32 s{sREM}, -16")
                a(agg(0))
                a("s_cbranch_scc1 L_extra")
            a(t_)
        a(agg(1))
        if u == 0:
            a("s_branch L_extra")

    a.label("L_extra")
    a(f"s_cmp_eq_u32 s{sTMAX}, 0")
    a("s_cbranch_scc1 L_rdone")
    a("s_barrier")
    a(f"s_sub_u32 s{sTMAX}, s{sTMAX}, 1")
    a("s_branch L_extra")
    a.label("L_rdone")
    stamp(a, 5)
    stamp(a, 10, it=True)
    a(f"s_or_b32 s{sT0}, s{sOV}, s{sOV+1}")
    a(f"s_or_b32 s{sT0}, s{sT0}, s{sOV+2}")
    a(f"s_max_i32 s{sT1}, s{sNA}, s{sNB}")
    a(f"s_max_i32 s{sT1}, s{sT1}, 0")
    a(f"s_or_b32 s{sT0}, s{sT0}, s{sT1}")
    a("s_cbranch_scc1 L_more")

    a.c("---- epilogue.  G = c*agg, U = c*x@Wu_top, so t = U + Wu_bot^T G = c*pre")
    a(f"s_cmp_le_i32 s{sI}, {5*32}")
    a("s_cbranch_scc1 L_agbar")
    a.label("L_ag")
    a(f"s_mul_i32 s{sT0}, s{sG}, {R*2048}")
    a(f"s_lshl_b32 s{sT2}, s{sQ}, 11")
    a(f"s_add_u32 s{sT0}, s{sT0}, s{sT2}")
    a(f"s_add_u32 s{sT0}, s{sT0}, {ST}")
    a(f"v_add_u32 v{t1}, s{sT0}, v{vL16}")
    for i in range(8):
        a(f"v_cvt_pk_bf16_f32 v{MS+i}, v{G+2*i}, v{G+2*i+1}")
    a(f"ds_write_b128 v{t1}, {vr(MS,4)}")
    a(f"ds_write_b128 v{t1}, {vr(MS+4,4)} offset:1024")
    a(f"s_lshl_b32 s{sT0}, s{sW}, 10")
    a(f"s_add_u32 s{sT0}, s{sT0}, {NT}")
    a(f"v_add_u32 v{t0}, s{sT0}, v{vL16}")
    a(f"v_mov_b32 v{t2}, s{sC}")
    a("s_waitcnt vmcnt(0) lgkmcnt(0)")
    a("s_barrier")
    b = Block(a)
    BF = T[0]
    for nt in range(3):
        for j in range(4):
            b(f"ds_read_b128 {vr(BF+(4*nt+j)*4,4)}, v{vAG+nt} offset:{j*2048}")
    Y = AF

    def o_mf(nt, j):
        return f"{MF16} {vr(U+4*nt,4)}, {vr(WF+16+4*j,4)}, {vr(BF+(4*nt+j)*4,4)}, {vr(U+4*nt,4)}"

    def o_silu(nt):
        o = 4 * nt
        ops = [f"v_exp_f32 v{Y+o+i}, v{U+o+i}" for i in range(4)]
        ops += [f"v_fma_f32 v{Y+o+i}, v{Y+o+i}, v{t2}, v{t2}" for i in range(4)]
        ops += [f"v_rcp_f32 v{Y+o+i}, v{Y+o+i}" for i in range(4)]
        ops += [f"v_mul_f32 v{Y+o+i}, v{Y+o+i}, v{U+o+i}" for i in range(4)]
        ops += [f"v_cvt_pk_bf16_f32 v{MS+2*nt+i}, v{Y+o+2*i}, v{Y+o+2*i+1}" for i in range(2)]
        ops += [f"ds_write_b64 v{vOW+nt}, {vr(MS+2*nt,2)}"]
        return ops
    for nt in range(2):
        for j in range(4):
            b(o_mf(nt, j))
    s0 = o_silu(0)
    for j in range(4):
        b(o_mf(2, j))
        b(s0[j])
    for t_ in s0[4:] + o_silu(1) + o_silu(2):
        b(t_)
    a("s_cmp_eq_u32 s2, 0")
    a("s_cbranch_scc0 L_nononce")
    a.c("next launch's nonce: every workgroup has read the old one by now")
    a(f"v_mov_b32 v{t3}, 0")
    a(f"v_mov_b32 v{t4}, s{sTAG}")
    a(f"buffer_store_dword v{t4}, v{t3}, s[{RWS}:{RWS+3}], 0 offen")
    a.label("L_nononce")
    a("s_waitcnt lgkmcnt(0)")
    a("s_barrier")
    OSC = "sc1" if "osc" in Opt.exp else ""
    a(f"ds_read_b128 {vr(T[0],4)}, v{t0}")
    a(f"s_cmp_lt_u32 s{sW}, 2")
    a("s_cbranch_scc0 L_st1")
    a(f"ds_read_b128 {vr(T[0]+4,4)}, v{t0} offset:8192")
    a("s_waitcnt lgkmcnt(0)")
    a(f"buffer_store_dwordx4 {vr(T[0]+4,4)}, v{vNO+1}, s[{ROUT}:{ROUT+3}], s{sB8} offen {OSC}")
    a.label("L_st1")
    a("s_waitcnt lgkmcnt(0)")
    a(f"buffer_store_dwordx4 {vr(T[0],4)}, v{vNO}, s[{ROUT}:{ROUT+3}], s{sB8} offen {OSC}")
    if Opt.stamps:
        a("s_waitcnt vmcnt(0)")
        stamp(a, 6)
        a("s_waitcnt lgkmcnt(0)")
        a(f"s_lshl_b32 s{sT0}, s2, 3")
        a(f"s_add_u32 s{sT0}, s{sT0}, s{sW}")
        a(f"s_lshl_b32 s{sT0}, s{sT0}, 6")
        a(f"s_add_u32 s{sT0}, s{sT0}, {WS_STAMP}")
        a(f"v_mov_b32 v{t0}, 0")
        for k in range(11):
            a(f"v_mov_b32 v{AF+k}, s{sST+2*k}")
        a(f"v_mov_b32 v{AF+11}, s{sTG}")
        for k in range(3):
            a(f"buffer_store_dwordx4 {vr(AF+4*k,4)}, v{t0}, s[{RWS}:{RWS+3}], s{sT0} offen offset:{16*k}")
    a.label("L_end")
    a("s_endpgm")

    a.label("L_role02")
    a(f"s_cmp_eq_u32 s{sROLE}, 0")
    a("s_cbranch_scc0 L_role2")
    a("s_waitcnt lgkmcnt(0)")
    a("s_barrier")
    poll_cells()
    a("s_waitcnt vmcnt(0)")
    a("s_branch L_common")

    a.label("L_role2")
    a(f"s_cmp_lt_u32 s{sSP}, 4")
    a(f"s_cselect_b32 s{sT0}, 3, 2")
    a(f"s_cselect_b32 s{sT1}, 1, 2")
    a(f"s_lshl_b32 s{sT1}, s{sT1}, 10")
    a(f"v_lshlrev_b32 v{t0}, s{sT0}, v{vNH}")
    a(f"v_lshl_add_u32 v{t0}, v{vH}, 4, v{t0}")
    a(f"v_add_u32 v{t0}, v{t0}, v{vR4}")
    a(f"s_lshl_b32 s{sT0}, s{sW}, 1")
    a(f"v_add_u32 v{t1}, s{sT0}, v{vC2}")
    a(f"v_xor_b32 v{t1}, v{t1}, v{vR44}")
    a(f"v_lshlrev_b32 v{t1}, 4, v{t1}")
    a(f"v_lshl_add_u32 v{t1}, v{vC1}, 3, v{t1}")
    a(f"v_lshl_add_u32 v{t3}, v{t0}, 8, v{t1}")
    a(f"v_add_u32 v{t4}, s{sT1}, v{t3}")
    a(f"s_lshl_b32 s{sT0}, s{sW}, 13")
    a(f"s_lshl_b32 s{sT1}, s{sSP}, 10")
    a(f"s_add_u32 s{sT0}, s{sT0}, s{sT1}")
    a(f"s_add_u32 s{sT0}, s{sT0}, {WS_FR}")
    a("s_waitcnt vmcnt(6) lgkmcnt(0)")
    a(f"s_add_u32 s{sTAG}, s{sTAG}, 1")
    a("s_barrier")
    stamp(a, 10)
    a(f"s_cmp_gt_u32 s{sSP}, 7")
    a("s_cbranch_scc1 L_r3")
    a(f"ds_read_b64_tr_b16 {vr(MS,2)}, v{t3}")
    a(f"ds_read_b64_tr_b16 {vr(MS+2,2)}, v{t4}")
    a("s_waitcnt lgkmcnt(0)")
    a(f"buffer_store_dwordx4 {vr(MS,4)}, v{vL16}, s[{RWS}:{RWS+3}], s{sT0} offen {SC}")
    a.label("L_r3")
    stamp(a, 7)
    arrive(2)
    poll_cells()
    a("s_waitcnt vmcnt(0)")
    a("s_branch L_common")

    a.c("---- slow paths")
    a.label("L_repoll")
    arrive(1)
    for sh_ in (4, 2, 1):
        a(f"s_lshr_b64 s[{sEX}:{sEX+1}], s[{sT1}:{sT1+1}], {sh_}")
        a(f"s_or_b64 s[{sT1}:{sT1+1}], s[{sT1}:{sT1+1}], s[{sEX}:{sEX+1}]")
    for k in range(2):
        a(f"s_and_b32 s{sT1+k}, s{sT1+k}, 0x01010101")
        a(f"s_mul_i32 s{sT1+k}, s{sT1+k}, 255")
    a(f"s_and_b64 exec, s[{sT1}:{sT1+1}], s[{sT1}:{sT1+1}]")
    a("s_cbranch_scc0 L_rp1")
    a(f"buffer_load_dwordx4 {vr(EN,4)}, v{vL16}, s[{RWS}:{RWS+3}], s{sCE} offen {SC}")
    a.label("L_rp1")
    a("s_cmp_lg_u32 vcc_lo, 0")
    a("s_cselect_b32 exec_lo, -1, 0")
    a("s_cmp_lg_u32 vcc_hi, 0")
    a("s_cselect_b32 exec_hi, -1, 0")
    a("s_cbranch_execz L_rp2")
    a(f"buffer_load_dword v{E3}, v{vL4}, s[{RWS}:{RWS+3}], s{sCE} offen offset:1024 {SC}")
    a.label("L_rp2")
    a("s_mov_b64 exec, -1")
    a(f"s_sub_u32 s{sSP}, s{sSP}, 1")
    a("s_waitcnt vmcnt(0)")
    a("s_cbranch_scc0 L_poll")
    a("s_endpgm")
    a.label("L_repollf")
    a("s_mov_b64 exec, vcc")
    poll_flags()
    a("s_mov_b64 exec, -1")
    a(f"s_sub_u32 s{sSP}, s{sSP}, 1")
    a("s_waitcnt vmcnt(0)")
    a("s_cbranch_scc0 L_pollf")
    a("s_endpgm")

    for u in (0, 1):
        a.label(f"L_exit{u}s")
        for f in range(8):
            a(fr_ld(f))
        a("s_waitcnt vmcnt(0) lgkmcnt(0)")
        for j in range(4):
            for nt in range(3):
                for t_ in n_rd(j, nt):
                    a(t_)
            a("s_waitcnt lgkmcnt(0)")
            for nt in range(3):
                a(u_mf(j, nt))
        for t_ in u_scale():
            a(t_)
        a(f"s_branch L_exit{u}")

    a.label("L_agbar")
    a("s_waitcnt lgkmcnt(0)")
    a("s_barrier")
    a("s_branch L_ag")

    a.label("L_bin_ovf")
    a("s_waitcnt lgkmcnt(0)")
    a("s_barrier")
    a(f"ds_read_b32 v{vU}, v{vA} offset:{CN}")
    a(f"v_mov_b32 v{vK}, 0")
    a(f"ds_write_b32 v{PA+1}, v{vK}")
    a(f"v_cmp_gt_u32 vcc, 256, v0")
    a("s_mov_b64 exec, vcc")
    a("s_waitcnt lgkmcnt(0)")
    a(f"v_cmp_lt_u32 vcc, {CAPK}, v{vU}")
    a(f"v_lshlrev_b32 v{vU}, 5, v0")
    for i in range(4):
        a(f"v_mov_b32 v{vF+i}, {OVF_MARK}")
    a("s_mov_b64 exec, vcc")
    for k in range(3):
        a(f"ds_write_b128 v{vU}, {vr(vF,4)} offset:{PL+k*8192}")
        a(f"ds_write_b128 v{vU}, {vr(vF,4)} offset:{PL+k*8192+16}")
    a("s_mov_b64 exec, -1")
    a("s_waitcnt lgkmcnt(0)")
    a("s_barrier")
    a("s_branch L_bin_out")

    a.label("L_markov")
    a(f"s_mul_i32 s{sT1}, s{sW}, 10")
    for (reg, shf, add) in ((EN, 3, 0), (E3, 5, 8)):
        a(f"v_lshrrev_b32 v{t1}, {shf}, v{vL}")
        a(f"v_add_u32 v{t1}, s{sT1}, v{t1}")
        a(f"v_add_u32 v{t1}, {add}, v{t1}")
        a(f"v_lshrrev_b32 v{t2}, 5, v{t1}")
        a(f"v_lshlrev_b32 v{t2}, 2, v{t2}")
        a(f"v_add_u32 v{t2}, {OVF}, v{t2}")
        a(f"v_lshlrev_b32_e64 v{t3}, v{t1}, 1")
        a(f"v_cmp_eq_u32 vcc, {OVF_MARK}, v{reg}")
        a("s_mov_b64 exec, vcc")
        a(f"ds_or_b32 v{t2}, v{t3}")
        a("s_mov_b64 exec, -1")
    a("s_branch L_count")

    a.label("L_more")
    a(f"s_cmp_eq_u32 s{sT1}, 0")
    a("s_cbranch_scc1 L_rescan")
    a("s_waitcnt vmcnt(0) lgkmcnt(0)")
    a("s_barrier")
    lds_init(False)
    a("s_waitcnt lgkmcnt(0)")
    a("s_barrier")
    a("s_branch L_round")

    a.label("L_rescan")
    for k in range(3):
        a(f"s_ff1_i32_b32 s{sT0}, s{sOV+k}")
        a(f"s_cmp_lt_i32 s{sT0}, 0")
        a(f"s_cbranch_scc1 L_rs{k}")
        a(f"s_bitset0_b32 s{sOV+k}, s{sT0}")
        a(f"s_add_u32 s{sT0}, s{sT0}, {32*k}")
        a("s_branch L_rsgo")
        a.label(f"L_rs{k}")
    a.label("L_rsgo")
    a(f"s_mul_i32 s{sT1}, s{sT0}, {CH}")
    a(f"v_mov_b32 v{EB}, s{sT1}")
    a(f"v_mov_b32 v{EB+1}, s{sT1}")
    a(f"s_lshl_b32 s{sT1}, s{sT1}, 2")
    a("s_waitcnt vmcnt(0) lgkmcnt(0)")
    a(f"buffer_load_dwordx4 {vr(T[0],4)}, v{vT16}, s[{RDST}:{RDST+3}], s{sT1} offen")
    a(f"buffer_load_dwordx4 {vr(T[0]+4,4)}, v{vT16}, s[{RSRC}:{RSRC+3}], s{sT1} offen")
    a("s_barrier")
    lds_init(True)
    a("s_waitcnt vmcnt(0)")
    a(f"v_lshlrev_b32 v{t1}, 22, v0")
    a(f"v_mov_b32 v{t3}, {CH//4}")
    for j in range(4):
        a(f"v_lshrrev_b32 v{t2}, 8, v{T[0]+j}")
        a(f"v_lshl_or_b32 v{t2}, v{T[0]+4+j}, 6, v{t2}")
        a(f"v_add_u32 v{t4}, {j << 20}, v{t1}")
        a(f"v_or_b32 v{t2}, v{t2}, v{t4}")
        a(f"v_and_b32 v{t4}, 255, v{T[0]+j}")
        a(f"v_cmp_eq_u32 vcc, s2, v{t4}")
        a(f"v_cndmask_b32 v{t2}, -1, v{t2}, vcc")
        a(f"v_cmp_gt_u32 vcc, v{t3}, v0")
        a(f"v_cndmask_b32 v{ENT[j]}, -1, v{t2}, vcc")
    a("s_waitcnt lgkmcnt(0)")
    a("s_barrier")
    a("s_branch L_count")
    a.label("L_code_end")
    return V


def build():
    a = Asm()
    hdr = open("cdna_kernels/%s.s.ref" % NAME).read().split("; Override")[0]
    a.raw(hdr.rstrip())
    a.raw(f"; @launch grid=(256,1,1) block=(512,1,1) lds={LDS}")
    a.raw('.amdgcn_target "amdgcn-amd-amdhsa--gfx950"\n.text')
    V = gen_main(a)
    a.raw('.section .rodata,"a"')
    a.raw(f""".p2align 6
.amdhsa_kernel {NAME}_kernel
  .amdhsa_next_free_vgpr 256
  .amdhsa_next_free_sgpr 102
  .amdhsa_accum_offset 256
  .amdhsa_group_segment_fixed_size 0
  .amdhsa_kernarg_size 72
  .amdhsa_user_sgpr_count 2
  .amdhsa_user_sgpr_kernarg_segment_ptr 1
  .amdhsa_system_sgpr_workgroup_id_x 1
.end_amdhsa_kernel""")
    return a, V


if __name__ == "__main__":
    out = sys.argv[1]
    Opt.exp = set(sys.argv[2:])
    Opt.stamps = "stamps" in Opt.exp
    Opt.cycst = "cyc" in Opt.exp
    a, V = build()
    open(out, "w").write(a.text())
    print("vgprs used:", V.next)
    if "log" in Opt.exp:
        for (ln, pad, t) in a.log:
            print("nop", pad, "before line", ln, t)
```
